```python
import torch

def _softmax(x, axis=-1):
    return torch.softmax(x, dim=axis)
def _gelu(x):
    return torch.nn.functional.gelu(x, approximate="tanh")
def _silu(x):
    return torch.nn.functional.silu(x)
def _sigmoid(x):
    return torch.sigmoid(x)
def _layernorm(x, axis=-1, eps=1e-5):
    m = x.mean(dim=axis, keepdim=True)
    v = x.var(dim=axis, keepdim=True, unbiased=False)
    return (x - m) / torch.sqrt(v + eps)
def _scatter_add(tgt, idx, src, axis=0):
    return tgt.clone().index_add_(axis, idx, src)
def _segment_sum(src, seg, n):
    out = torch.zeros((n,) + src.shape[1:], dtype=src.dtype)
    return out.index_add_(0, seg, src)
def _pad(x, pw):
    flat = tuple(v for pair in reversed(pw) for v in pair)
    return torch.nn.functional.pad(x, flat)

kernel_name = 'parallel_sum__sliding_block__glu_gated_reglu__prompt'

def setup_inputs():

    _w = (lambda a: (lambda t: t.to(torch.bfloat16) if t.is_floating_point() else t)(torch.as_tensor(a)))
    def _A_setup():
        B, S, D = 1, 2048, 1024
        return {
            "x": _w((lambda *s: torch.randn(*s, dtype=torch.bfloat16) * 0.05)(B, S, D)),
            "wqkv": _w((lambda *s: torch.randn(*s, dtype=torch.bfloat16) * 0.05)(D, 3 * D)),
            "wo": _w((lambda *s: torch.randn(*s, dtype=torch.bfloat16) * 0.05)(D, D)),
        }
    _A_in = _A_setup()

    def _B_setup():
        B, S, D, F = 1, 2048, 1024, 3584
        return {
            "x": _w((lambda *s: torch.randn(*s, dtype=torch.bfloat16) * 0.05)(B, S, D)),
            "W_gate": _w((lambda *s: torch.randn(*s, dtype=torch.bfloat16) * 0.8)(D, F) * (2.0 / D) ** 0.5),
            "W_up": _w((lambda *s: torch.randn(*s, dtype=torch.bfloat16) * 0.8)(D, F) * (2.0 / D) ** 0.5),
            "W_down": _w((lambda *s: torch.randn(*s, dtype=torch.bfloat16) * 0.8)(F, D) * (1.0 / F) ** 0.5),
        }
    _B_in = _B_setup()

    return {
        "A_x": _A_in["x"],
        "A_wqkv": _A_in["wqkv"],
        "A_wo": _A_in["wo"],
        "B_x": _B_in["x"],
        "B_W_gate": _B_in["W_gate"],
        "B_W_up": _B_in["W_up"],
        "B_W_down": _B_in["W_down"],
    }

def reference(A_x, A_wqkv, A_wo, B_x, B_W_gate, B_W_up, B_W_down):
    def _A_ref(x, wqkv, wo):
        B, S, D = x.shape
        H = 32; Dh = D // H; W = 256
        qkv = (lambda x, *d: x.permute(*d))((x @ wqkv).reshape(B, S, 3, H, Dh), 2, 0, 3, 1, 4)
        q, k, v = qkv[0], qkv[1], qkv[2]
        scores = torch.einsum("bhqd,bhkd->bhqk", q, k) * (Dh ** -0.5)
        idx = torch.arange(S)
        mask = (idx[:, None] - idx[None, :] >= 0) & (idx[:, None] - idx[None, :] < W)
        scores = torch.where(mask[None, None], scores, -1e9)
        p = _softmax(scores, axis=-1)
        o = torch.einsum("bhqk,bhkd->bhqd", p, v)
        return (lambda x, *d: x.permute(*d))(o, 0, 2, 1, 3).reshape(B, S, D) @ wo

    def _B_ref(x, W_gate, W_up, W_down):
        gate = torch.einsum("bsd,df->bsf", x, W_gate)
        up = torch.einsum("bsd,df->bsf", x, W_up)
        gate = gate * (lambda x, dt: x.to(dt))(gate > 0, gate.dtype)
        h = gate * up
        return torch.einsum("bsf,fd->bsd", h, W_down)

    x = A_x
    xn = _layernorm(x, axis=-1)
    return x + _A_ref(xn, A_wqkv, A_wo) + _B_ref(xn, B_W_gate, B_W_up, B_W_down)
```

```python
import sys

NAME = "parallel_sum__sliding_block__glu_gated_reglu__prompt"
WS_XN = 0
WS_QKV = 4 << 20
WS_OH = 16 << 20


class Asm:
    def __init__(self):
        self.lines = []
        self.nlab = 0

    def __call__(self, s):
        for l in s.strip("\n").split("\n"):
            self.lines.append("    " + l.strip())

    def label(self, l):
        self.lines.append(l + ":")

    def newlabel(self, p="L"):
        self.nlab += 1
        return f"{p}_{self.nlab}"

    def text(self):
        return "\n".join(self.lines) + "\n"


def kernel_begin(a, name):
    a.lines.append(f".globl {name}")
    a.lines.append(".p2align 8")
    a.lines.append(f".type {name},@function")
    a.label(name)


def kernel_desc(name, vgpr, sgpr=102):
    acc = (vgpr + 3) // 4 * 4
    acc = max(4, min(256, acc))
    return f""".amdhsa_kernel {name}
  .amdhsa_next_free_vgpr {vgpr}
  .amdhsa_next_free_sgpr {sgpr}
  .amdhsa_accum_offset {acc}
  .amdhsa_group_segment_fixed_size 0
  .amdhsa_kernarg_size 80
  .amdhsa_user_sgpr_count 2
  .amdhsa_user_sgpr_kernarg_segment_ptr 1
  .amdhsa_system_sgpr_workgroup_id_x 1
.end_amdhsa_kernel
"""


def srd(a, s, lo, hi, size):
    a(f"s_mov_b32 s{s}, s{lo}")
    a(f"s_mov_b32 s{s+1}, s{hi}")
    a(f"s_mov_b32 s{s+2}, {size}")
    a(f"s_mov_b32 s{s+3}, 0x00020000")


def bf16r(a, v, t=None):
    a(f"v_cvt_pk_bf16_f32 v{v}, v{v}, v{v}")
    a(f"v_lshlrev_b32 v{v}, 16, v{v}")


def emit_ln(a):
    kernel_begin(a, "ln_kernel")
    a("s_cmp_ge_u32 s2, 512")
    a("s_cbranch_scc1 L_ln_done")
    a("s_load_dwordx2 s[4:5], s[0:1], 0")
    a("s_load_dwordx2 s[6:7], s[0:1], 72")
    a("v_lshrrev_b32 v1, 6, v0")
    a("v_and_b32 v2, 63, v0")
    a("s_lshl_b32 s3, s2, 2")
    a("v_add_u32 v1, s3, v1")
    a("v_lshlrev_b32 v1, 11, v1")
    a("v_lshl_add_u32 v1, v2, 5, v1")
    a("v_xor_b32 v3, 32, v2")
    a("v_lshlrev_b32 v3, 2, v3")
    a("s_waitcnt lgkmcnt(0)")
    srd(a, 8, 4, 5, 4194304)
    srd(a, 12, 6, 7, 4194304)
    a("buffer_load_dwordx4 v[4:7], v1, s[8:11], 0 offen")
    a("buffer_load_dwordx4 v[8:11], v1, s[8:11], 0 offen offset:16")
    a("s_waitcnt vmcnt(0)")
    for i in range(8):
        a(f"v_lshlrev_b32 v{16+2*i}, 16, v{4+i}")
        a(f"v_and_b32 v{17+2*i}, 0xffff0000, v{4+i}")
    a("v_add_f32 v32, v16, v17")
    for i in range(2, 16):
        a(f"v_add_f32 v32, v32, v{16+i}")

    def reduce(v):
        for m in (1, 2, 4, 8, 16):
            a(f"ds_swizzle_b32 v33, v{v} offset:{(m << 10) | 0x1f}")
            a("s_waitcnt lgkmcnt(0)")
            a(f"v_add_f32 v{v}, v{v}, v33")
        a(f"ds_bpermute_b32 v33, v3, v{v}")
        a("s_waitcnt lgkmcnt(0)")
        a(f"v_add_f32 v{v}, v{v}, v33")

    reduce(32)
    a("v_mul_f32 v32, 0x3a800000, v32")
    a("v_sub_f32 v35, v16, v32")
    a("v_mul_f32 v34, v35, v35")
    for i in range(1, 16):
        a(f"v_sub_f32 v35, v{16+i}, v32")
        a(f"v_fmac_f32 v34, v35, v35")
    reduce(34)
    a("v_mul_f32 v34, 0x3a800000, v34")
    bf16r(a, 32)
    bf16r(a, 34)
    a("v_add_f32 v34, 0x3727c5ac, v34")
    bf16r(a, 34)
    a("v_sqrt_f32 v34, v34")
    a("s_nop 0")
    bf16r(a, 34)
    a("v_rcp_f32 v34, v34")
    a("s_nop 0")
    for i in range(16):
        a(f"v_sub_f32 v{16+i}, v{16+i}, v32")
    for i in range(16):
        bf16r(a, 16 + i)
    for i in range(16):
        a(f"v_mul_f32 v{16+i}, v{16+i}, v34")
    for i in range(8):
        a(f"v_cvt_pk_bf16_f32 v{4+i}, v{16+2*i}, v{17+2*i}")
    a("buffer_store_dwordx4 v[4:7], v1, s[12:15], 0 offen")
    a("buffer_store_dwordx4 v[8:11], v1, s[12:15], 0 offen offset:16")
    a.label("L_ln_done")
    a("s_endpgm")


V_XOFF = 4
V_WOFF = 8
V_XRD = 12
V_WRD = 16
V_TMP = 18
V_FR = 24
V_ACC = 56
V_END = 120


def acc(st, mt):
    b = V_ACC + (st * 2 + mt) * 16
    return b


def emit_issue_loads(a, buf, adv):
    for j in range(4):
        a(f"s_add_u32 m0, s22, {buf*32768 + j*1024}")
        a("s_nop 0")
        a(f"buffer_load_dwordx4 v{V_XOFF+j}, s[8:11], s16 offen lds")
    for j in range(4):
        a(f"s_add_u32 m0, s22, {buf*32768 + 16384 + j*1024}")
        a("s_nop 0")
        a(f"buffer_load_dwordx4 v{V_WOFF+j}, s[12:15], s17 offen lds")
    adv()


def emit_read_frags(a, buf, ks, s):
    fb = V_FR + s * 16
    base = buf * 32768
    for st in range(2):
        for hh in range(2):
            off = base + 16384 + st * 8192 + (ks * 16 + hh * 4) * 128
            a(f"ds_read_b64_tr_b16 v[{fb+st*4+hh*2}:{fb+st*4+hh*2+1}], v{V_WRD} offset:{off}")
    for mt in range(2):
        off = base + mt * 4096
        a(f"ds_read_b128 v[{fb+8+mt*4}:{fb+8+mt*4+3}], v{V_XRD+ks} offset:{off}")


def emit_compute(a, buf):
    emit_read_frags(a, buf, 0, 0)
    for ks in range(4):
        if ks < 3:
            emit_read_frags(a, buf, ks + 1, (ks + 1) % 2)
            a("s_waitcnt lgkmcnt(6)")
        else:
            a("s_waitcnt lgkmcnt(0)")
        fb = V_FR + (ks % 2) * 16
        for st in range(2):
            for mt in range(2):
                d = acc(st, mt)
                a(f"v_mfma_f32_32x32x16_bf16 v[{d}:{d+15}], v[{fb+st*4}:{fb+st*4+3}], v[{fb+8+mt*4}:{fb+8+mt*4+3}], v[{d}:{d+15}]")


def emit_gemm(a, kind):
    name = f"{kind}_kernel"
    g1 = kind == "gemm1"
    NWG = 1280 if g1 else 128
    KT = 16 if g1 else 72
    kernel_begin(a, name)
    L = lambda s: f"L_{kind}_{s}"
    a(f"s_cmp_ge_u32 s2, {NWG}")
    a(f"s_cbranch_scc1 {L('done')}")
    if g1:
        a("s_load_dwordx2 s[4:5], s[0:1], 8")
        a("s_load_dwordx2 s[6:7], s[0:1], 32")
        a("s_load_dwordx2 s[24:25], s[0:1], 40")
    else:
        a("s_load_dwordx2 s[4:5], s[0:1], 16")
        a("s_load_dwordx2 s[6:7], s[0:1], 48")
        a("s_load_dwordx2 s[24:25], s[0:1], 0")
        a("s_load_dwordx2 s[28:29], s[0:1], 56")
    a("s_load_dwordx2 s[26:27], s[0:1], 72")
    a("v_lshrrev_b32 v1, 6, v0")
    a("v_and_b32 v2, 63, v0")
    a("s_nop 0")
    a("v_readfirstlane_b32 s20, v1")
    if g1:
        a("s_and_b32 s3, s2, 7")
        a("s_lshr_b32 s18, s2, 3")
        a("s_and_b32 s30, s18, 15")
        a("s_lshr_b32 s18, s18, 4")
        a("s_mul_i32 s31, s3, 10")
        a("s_add_u32 s31, s31, s18")
    else:
        a("s_and_b32 s31, s2, 7")
        a("s_lshr_b32 s30, s2, 3")
    a("s_lshl_b32 s22, s20, 12")
    a("s_lshr_b32 s21, s20, 1")
    a("s_waitcnt lgkmcnt(0)")
    if g1:
        ldx = 2048
        a("s_lshl_b32 s18, s30, 18")
        a("s_add_u32 s8, s26, s18")
        a("s_addc_u32 s9, s27, 0")
        a("s_sub_u32 s10, 4194304, s18")
    else:
        ldx = 9216
        a(f"s_mul_i32 s18, s30, {128*9216}")
        a(f"s_add_u32 s18, s18, {WS_OH}")
        a("s_add_u32 s8, s26, s18")
        a("s_addc_u32 s9, s27, 0")
        a(f"s_sub_u32 s10, {WS_OH + 2048*9216}, s18")
    a("s_mov_b32 s11, 0x00020000")
    if g1:
        a("s_cmp_lt_u32 s31, 24")
        a(f"s_cbranch_scc0 {L('gu')}")
        a("s_lshl_b32 s18, s31, 8")
        a("s_lshl_b32 s19, s21, 7")
        a("s_add_u32 s18, s18, s19")
        a("s_add_u32 s12, s4, s18")
        a("s_addc_u32 s13, s5, 0")
        a("s_sub_u32 s14, 6291456, s18")
        a("s_movk_i32 s23, 6144")
        a(f"s_branch {L('wdone')}")
        a.label(L("gu"))
        a("s_sub_u32 s18, s31, 24")
        a("s_lshl_b32 s18, s18, 7")
        a("s_cmp_eq_u32 s21, 0")
        a("s_cselect_b32 s12, s6, s24")
        a("s_cselect_b32 s13, s7, s25")
        a("s_add_u32 s12, s12, s18")
        a("s_addc_u32 s13, s13, 0")
        a("s_sub_u32 s14, 7340032, s18")
        a("s_movk_i32 s23, 7168")
        a.label(L("wdone"))
    else:
        a("s_lshl_b32 s18, s31, 8")
        a("s_lshl_b32 s19, s21, 7")
        a("s_add_u32 s18, s18, s19")
        a("s_add_u32 s12, s4, s18")
        a("s_addc_u32 s13, s5, 0")
        a("s_sub_u32 s14, 2097152, s18")
        a("s_add_u32 s32, s6, s18")
        a("s_addc_u32 s33, s7, 0")
        a("s_sub_u32 s34, 7340032, s18")
        a("s_movk_i32 s23, 2048")
    a("s_mov_b32 s15, 0x00020000")
    a("s_lshl_b32 s19, s23, 6")
    a("s_mov_b32 s16, 0")
    a("s_mov_b32 s17, 0")
    a("s_mov_b32 s18, 0")
    t = V_TMP
    a(f"v_lshrrev_b32 v{t}, 3, v2")
    a(f"v_and_b32 v{t+1}, 7, v2")
    a(f"v_lshrrev_b32 v{t+2}, 4, v2")
    a("s_lshl_b32 s35, s20, 5")
    for j in range(4):
        a(f"v_add_u32 v{t+3}, s35, v{t}")
        if j:
            a(f"v_add_u32 v{t+3}, {8*j}, v{t+3}")
        a(f"s_movk_i32 s36, {ldx}")
        a(f"v_mul_lo_u32 v{t+3}, v{t+3}, s36")
        a(f"v_or_b32 v{t+4}, {4*(j&1)}, v{t+2}")
        a(f"v_xor_b32 v{t+4}, v{t+4}, v{t+1}")
        a(f"v_lshl_add_u32 v{V_XOFF+j}, v{t+4}, 4, v{t+3}")
    a("s_and_b32 s35, s20, 1")
    a("s_lshl_b32 s35, s35, 5")
    a(f"v_and_b32 v{t+4}, 1, v{t+2}")
    a(f"v_lshlrev_b32 v{t+4}, 2, v{t+4}")
    a(f"v_xor_b32 v{t+4}, v{t+4}, v{t+1}")
    a(f"v_lshlrev_b32 v{t+4}, 4, v{t+4}")
    for j in range(4):
        a(f"v_add_u32 v{t+3}, s35, v{t}")
        if j:
            a(f"v_add_u32 v{t+3}, {8*j}, v{t+3}")
        a(f"v_mul_lo_u32 v{t+3}, v{t+3}, s23")
        a(f"v_add_u32 v{V_WOFF+j}, v{t+3}, v{t+4}")
    a(f"v_and_b32 v{t}, 31, v2")
    a(f"v_lshrrev_b32 v{t+1}, 5, v2")
    a("s_lshr_b32 s35, s20, 1")
    a("s_lshl_b32 s35, s35, 6")
    a(f"v_add_u32 v{t+2}, s35, v{t}")
    a(f"v_lshlrev_b32 v{t+2}, 7, v{t+2}")
    a(f"v_bfe_u32 v{t+3}, v{t}, 1, 3")
    for ks in range(4):
        a(f"v_or_b32 v{t+4}, {ks*2}, v{t+1}")
        a(f"v_xor_b32 v{t+4}, v{t+4}, v{t+3}")
        a(f"v_lshl_add_u32 v{V_XRD+ks}, v{t+4}, 4, v{t+2}")
    a(f"v_bfe_u32 v{t}, v2, 2, 2")
    a(f"v_lshrrev_b32 v{t+1}, 5, v2")
    a(f"v_lshl_add_u32 v{t+1}, v{t+1}, 3, v{t}")
    a(f"v_lshlrev_b32 v{t+1}, 7, v{t+1}")
    a(f"v_bfe_u32 v{t+2}, v2, 4, 1")
    a(f"v_bfe_u32 v{t+3}, v2, 1, 1")
    a(f"v_lshl_add_u32 v{t+2}, v{t+2}, 1, v{t+3}")
    a("s_and_b32 s35, s20, 1")
    a("s_lshl_b32 s35, s35, 2")
    a(f"v_add_u32 v{t+2}, s35, v{t+2}")
    a(f"v_bfe_u32 v{t+3}, v2, 3, 1")
    a(f"v_lshlrev_b32 v{t+3}, 2, v{t+3}")
    a(f"v_xor_b32 v{t+2}, v{t+2}, v{t+3}")
    a(f"v_lshl_add_u32 v{t+1}, v{t+2}, 4, v{t+1}")
    a(f"v_and_b32 v{t+3}, 1, v2")
    a(f"v_lshl_add_u32 v{V_WRD}, v{t+3}, 3, v{t+1}")
    for i in range(64):
        a(f"v_mov_b32 v{V_ACC+i}, 0")

    def adv():
        a("s_add_u32 s16, s16, 128")
        a("s_add_u32 s17, s17, s19")
        if not g1:
            a("s_add_u32 s18, s18, 1")
            a("s_cmp_eq_u32 s18, 16")
            a("s_cselect_b32 s12, s32, s12")
            a("s_cselect_b32 s13, s33, s13")
            a("s_cselect_b32 s14, s34, s14")
            a("s_cselect_b32 s17, 0, s17")

    emit_issue_loads(a, 0, adv)
    a(f"s_movk_i32 s37, {KT//2 - 1}")
    if KT // 2 - 1 > 0:
        a.label(L("loop"))
        emit_issue_loads(a, 1, adv)
        a("s_waitcnt vmcnt(8)")
        a("s_barrier")
        emit_compute(a, 0)
        a("s_barrier")
        emit_issue_loads(a, 0, adv)
        a("s_waitcnt vmcnt(8)")
        a("s_barrier")
        emit_compute(a, 1)
        a("s_barrier")
        a("s_sub_u32 s37, s37, 1")
        a("s_cmp_lg_u32 s37, 0")
        a(f"s_cbranch_scc1 {L('loop')}")
    emit_issue_loads(a, 1, adv)
    a("s_waitcnt vmcnt(8)")
    a("s_barrier")
    emit_compute(a, 0)
    a("s_waitcnt vmcnt(0)")
    a("s_barrier")
    emit_compute(a, 1)
    a("s_nop 15")
    a("s_nop 7")
    a(f"v_and_b32 v{t}, 31, v2")
    a(f"v_lshrrev_b32 v{t+1}, 5, v2")
    a("s_lshr_b32 s35, s20, 1")
    a("s_lshl_b32 s35, s35, 6")
    a("s_lshl_b32 s36, s30, 7")
    a("s_add_u32 s35, s35, s36")
    a(f"v_add_u32 v{t}, s35, v{t}")
    a("s_and_b32 s35, s20, 1")
    a("s_lshl_b32 s35, s35, 5")
    a(f"v_lshl_add_u32 v{t+1}, v{t+1}, 2, s35")
    if g1:
        a("s_cmp_lt_u32 s31, 24")
        a(f"s_cbranch_scc0 {L('epi_gu')}")
        a(f"s_add_u32 s8, s26, {WS_QKV}")
        a("s_addc_u32 s9, s27, 0")
        a(f"s_mov_b32 s10, {2048*6144}")
        a("s_movk_i32 s36, 6144")
        a(f"v_mul_lo_u32 v{t}, v{t}, s36")
        a("s_lshl_b32 s35, s31, 7")
        a(f"v_add_u32 v{t+1}, s35, v{t+1}")
        a(f"v_lshl_add_u32 v{t}, v{t+1}, 1, v{t}")
        a(f"v_add_u32 v{t+1}, {32*6144}, v{t}")
        for st in range(2):
            for mt in range(2):
                for g in range(4):
                    r = acc(st, mt) + 4 * g
                    a(f"v_cvt_pk_bf16_f32 v{t+2}, v{r}, v{r+1}")
                    a(f"v_cvt_pk_bf16_f32 v{t+3}, v{r+2}, v{r+3}")
                    a(f"buffer_store_dwordx2 v[{t+2}:{t+3}], v{t+mt}, s[8:11], 0 offen offset:{st*128+g*16}")
        a(f"s_branch {L('done')}")
        a.label(L("epi_gu"))
        a(f"s_add_u32 s8, s26, {WS_OH}")
        a("s_addc_u32 s9, s27, 0")
        a(f"s_mov_b32 s10, {2048*9216}")
        a("s_movk_i32 s36, 9216")
        a(f"v_mul_lo_u32 v{t}, v{t}, s36")
        a("s_sub_u32 s35, s31, 24")
        a("s_lshl_b32 s35, s35, 6")
        a("s_add_u32 s35, s35, 1024")
        a(f"v_add_u32 v{t+1}, s35, v{t+1}")
        a(f"v_lshl_add_u32 v{t}, v{t+1}, 1, v{t}")
        a(f"v_add_u32 v{t+1}, {32*9216}, v{t}")
        for mt in range(2):
            for g in range(4):
                rg = acc(0, mt) + 4 * g
                ru = acc(1, mt) + 4 * g
                a(f"v_cvt_pk_bf16_f32 v{t+2}, v{rg}, v{rg+1}")
                a(f"v_cvt_pk_bf16_f32 v{t+3}, v{rg+2}, v{rg+3}")
                a(f"v_cvt_pk_bf16_f32 v{t+4}, v{ru}, v{ru+1}")
                a(f"v_cvt_pk_bf16_f32 v{t+5}, v{ru+2}, v{ru+3}")
                a(f"v_lshlrev_b32 v{rg}, 16, v{t+2}")
                a(f"v_and_b32 v{rg+1}, 0xffff0000, v{t+2}")
                a(f"v_lshlrev_b32 v{rg+2}, 16, v{t+3}")
                a(f"v_and_b32 v{rg+3}, 0xffff0000, v{t+3}")
                a(f"v_lshlrev_b32 v{ru}, 16, v{t+4}")
                a(f"v_and_b32 v{ru+1}, 0xffff0000, v{t+4}")
                a(f"v_lshlrev_b32 v{ru+2}, 16, v{t+5}")
                a(f"v_and_b32 v{ru+3}, 0xffff0000, v{t+5}")
                for i in range(4):
                    a(f"v_max_f32 v{rg+i}, 0, v{rg+i}")
                for i in range(4):
                    a(f"v_mul_f32 v{rg+i}, v{rg+i}, v{ru+i}")
                a(f"v_cvt_pk_bf16_f32 v{t+2}, v{rg}, v{rg+1}")
                a(f"v_cvt_pk_bf16_f32 v{t+3}, v{rg+2}, v{rg+3}")
                a(f"buffer_store_dwordx2 v[{t+2}:{t+3}], v{t+mt}, s[8:11], 0 offen offset:{g*16}")
    else:
        a("s_mov_b32 s8, s24")
        a("s_mov_b32 s9, s25")
        a("s_mov_b32 s10, 4194304")
        a("s_mov_b32 s12, s28")
        a("s_mov_b32 s13, s29")
        a("s_mov_b32 s14, 4194304")
        a(f"v_lshlrev_b32 v{t}, 11, v{t}")
        a("s_lshl_b32 s35, s31, 7")
        a(f"v_add_u32 v{t+1}, s35, v{t+1}")
        a(f"v_lshl_add_u32 v{t}, v{t+1}, 1, v{t}")
        a(f"v_add_u32 v{t+1}, {32*2048}, v{t}")
        idx = 0
        for st in range(2):
            for mt in range(2):
                for g in range(4):
                    a(f"buffer_load_dwordx2 v[{V_FR+2*idx}:{V_FR+2*idx+1}], v{t+mt}, s[8:11], 0 offen offset:{st*128+g*16}")
                    idx += 1
        a("s_waitcnt vmcnt(0)")
        idx = 0
        for st in range(2):
            for mt in range(2):
                for g in range(4):
                    r = acc(st, mt) + 4 * g
                    x0, x1 = V_FR + 2 * idx, V_FR + 2 * idx + 1
                    a(f"v_lshlrev_b32 v{t+2}, 16, v{x0}")
                    a(f"v_and_b32 v{t+3}, 0xffff0000, v{x0}")
                    a(f"v_lshlrev_b32 v{t+4}, 16, v{x1}")
                    a(f"v_and_b32 v{t+5}, 0xffff0000, v{x1}")
                    for i in range(4):
                        a(f"v_add_f32 v{r+i}, v{r+i}, v{t+2+i}")
                    a(f"v_cvt_pk_bf16_f32 v{x0}, v{r}, v{r+1}")
                    a(f"v_cvt_pk_bf16_f32 v{x1}, v{r+2}, v{r+3}")
                    a(f"buffer_store_dwordx2 v[{x0}:{x1}], v{t+mt}, s[12:15], 0 offen offset:{st*128+g*16}")
                    idx += 1
    a.label(L("done"))
    a("s_endpgm")


def emit_attn(a):
    kernel_begin(a, "attn_kernel")
    L = lambda s: f"L_attn_{s}"
    VQ = 8
    VK = 16
    VS = 88
    VO = 232
    VP = 16
    VT = 248
    a("s_cmp_ge_u32 s2, 512")
    a(f"s_cbranch_scc1 {L('done')}")
    a("s_load_dwordx2 s[26:27], s[0:1], 72")
    a("v_lshrrev_b32 v1, 6, v0")
    a("v_and_b32 v2, 63, v0")
    a("s_nop 0")
    a("v_readfirstlane_b32 s20, v1")
    a("s_and_b32 s3, s2, 7")
    a("s_lshl_b32 s3, s3, 2")
    a("s_bfe_u32 s4, s2, 0x20003")
    a("s_add_u32 s30, s3, s4")
    a("s_lshr_b32 s31, s2, 5")
    a("s_waitcnt lgkmcnt(0)")
    a(f"s_add_u32 s8, s26, {WS_QKV}")
    a("s_addc_u32 s9, s27, 0")
    a(f"s_mov_b32 s10, {2048*6144}")
    a("s_mov_b32 s11, 0x00020000")
    a("v_and_b32 v3, 31, v2")
    a("v_lshrrev_b32 v4, 5, v2")
    a("v_xor_b32 v5, 32, v2")
    a("v_lshlrev_b32 v5, 2, v5")
    a("s_lshl_b32 s32, s31, 7")
    a("s_lshl_b32 s33, s20, 5")
    a("s_add_u32 s32, s32, s33")
    a("s_movk_i32 s36, 6144")
    a("s_lshl_b32 s34, s30, 6")
    a(f"v_lshrrev_b32 v{VT}, 2, v2")
    a("s_lshl_b32 s35, s31, 7")
    a("s_mul_i32 s37, s20, 96")
    a("s_add_u32 s35, s35, s37")
    a("s_sub_u32 s35, s35, 256")
    a(f"v_add_u32 v{VT}, s35, v{VT}")
    a(f"v_mul_lo_u32 v{VT}, v{VT}, s36")
    a(f"v_and_b32 v{VT+1}, 3, v2")
    a(f"v_lshl_add_u32 v{VT}, v{VT+1}, 4, v{VT}")
    a("s_add_u32 s35, s34, 4096")
    a(f"v_add_u32 v{VT}, s35, v{VT}")
    a("s_mul_i32 s38, s20, 6144")
    for j in range(6):
        a(f"s_add_u32 m0, s38, {j*1024}")
        if j:
            a(f"v_add_u32 v{VT}, {16*6144}, v{VT}")
        else:
            a("s_nop 0")
        a(f"buffer_load_dwordx4 v{VT}, s[8:11], 0 offen lds")
    a(f"v_add_u32 v6, s32, v3")
    a(f"v_mul_lo_u32 v6, v6, s36")
    a(f"v_lshl_add_u32 v6, v4, 4, v6")
    a(f"v_add_u32 v6, s34, v6")
    a(f"buffer_load_dwordx4 v[{VQ}:{VQ+3}], v6, s[8:11], 0 offen")
    a(f"buffer_load_dwordx4 v[{VQ+4}:{VQ+7}], v6, s[8:11], 0 offen offset:32")
    a(f"v_add_u32 v7, {(2048 - 256*6144) & 0xffffffff}, v6")
    for b in range(9):
        a(f"buffer_load_dwordx4 v[{VK+8*b}:{VK+8*b+3}], v7, s[8:11], 0 offen")
        a(f"buffer_load_dwordx4 v[{VK+8*b+4}:{VK+8*b+7}], v7, s[8:11], 0 offen offset:32")
        if b < 8:
            a(f"v_add_u32 v7, {32*6144}, v7")
    for i in range(144):
        a(f"v_mov_b32 v{VS+i}, 0")
    for i in range(16):
        a(f"v_mov_b32 v{VO+i}, 0")
    a(f"v_lshlrev_b32 v{VT}, 2, v4")
    a(f"v_sub_u32 v{VT}, v3, v{VT}")
    for r in range(16):
        c = 8 * (r // 4) + (r % 4)
        a(f"v_cmp_gt_i32 s[{40+2*r}:{41+2*r}], {c}, v{VT}")
    a("s_waitcnt vmcnt(0)")
    for b in range(9):
        d = VS + 16 * b
        a(f"v_mfma_f32_32x32x16_bf16 v[{d}:{d+15}], v[{VK+8*b}:{VK+8*b+3}], v[{VQ}:{VQ+3}], v[{d}:{d+15}]")
    for b in range(9):
        d = VS + 16 * b
        a(f"v_mfma_f32_32x32x16_bf16 v[{d}:{d+15}], v[{VK+8*b+4}:{VK+8*b+7}], v[{VQ+4}:{VQ+7}], v[{d}:{d+15}]")
    a("s_nop 15")
    a("s_nop 7")
    a("s_mov_b32 s37, 0x3e3504f3")
    for i in range(0, 144, 2):
        r = VS + i
        a(f"v_cvt_pk_bf16_f32 v{VT}, v{r}, v{r+1}")
        a(f"v_lshlrev_b32 v{r}, 16, v{VT}")
        a(f"v_and_b32 v{r+1}, 0xffff0000, v{VT}")
        a(f"v_mul_f32 v{r}, s37, v{r}")
        a(f"v_mul_f32 v{r+1}, s37, v{r+1}")
        a(f"v_cvt_pk_bf16_f32 v{VT}, v{r}, v{r+1}")
        a(f"v_lshlrev_b32 v{r}, 16, v{VT}")
        a(f"v_and_b32 v{r+1}, 0xffff0000, v{VT}")
    a("s_mov_b32 s37, 0xce6e6b28")
    a(f"v_mov_b32 v{VT}, s37")
    for r in range(16):
        a(f"v_cndmask_b32 v{VS+r}, v{VT}, v{VS+r}, s[{40+2*r}:{41+2*r}]")
        a(f"v_cndmask_b32 v{VS+128+r}, v{VS+128+r}, v{VT}, s[{40+2*r}:{41+2*r}]")
    a("s_lshr_b32 s35, s32, 5")
    a("s_sub_i32 s35, 8, s35")
    for b in range(8):
        lab = L(f"nb{b}")
        a(f"s_cmp_gt_i32 s35, {b}")
        a(f"s_cbranch_scc0 {L('nbdone')}")
        for r in range(16):
            a(f"v_mov_b32 v{VS+16*b+r}, v{VT}")
    a.label(L("nbdone"))
    a(f"v_max_f32 v{VT+1}, v{VS}, v{VS+1}")
    for i in range(2, 144, 2):
        a(f"v_max3_f32 v{VT+1}, v{VT+1}, v{VS+i}, v{VS+i+1}")
    a(f"ds_bpermute_b32 v{VT+2}, v5, v{VT+1}")
    a("s_waitcnt lgkmcnt(0)")
    a(f"v_max_f32 v{VT+1}, v{VT+1}, v{VT+2}")
    a("s_mov_b32 s37, 0x3fb8aa3b")
    a(f"v_mul_f32 v{VT+1}, s37, v{VT+1}")
    for i in range(144):
        a(f"v_fma_f32 v{VS+i}, v{VS+i}, s37, -v{VT+1}")
    for i in range(144):
        a(f"v_exp_f32 v{VS+i}, v{VS+i}")
    a("s_nop 0")
    a(f"v_add_f32 v{VT+2}, v{VS}, v{VS+1}")
    for i in range(2, 144):
        a(f"v_add_f32 v{VT+2}, v{VT+2}, v{VS+i}")
    a(f"ds_bpermute_b32 v{VT+3}, v5, v{VT+2}")
    a("s_waitcnt lgkmcnt(0)")
    a(f"v_add_f32 v{VT+2}, v{VT+2}, v{VT+3}")
    a(f"v_rcp_f32 v{VT+2}, v{VT+2}")
    a("s_nop 0")
    for i in range(0, 144, 2):
        a(f"v_mul_f32 v{VS+i}, v{VS+i}, v{VT+2}")
        a(f"v_mul_f32 v{VS+i+1}, v{VS+i+1}, v{VT+2}")
        a(f"v_cvt_pk_bf16_f32 v{VP+i//2}, v{VS+i}, v{VS+i+1}")
    a(f"v_bfe_u32 v{VT}, v2, 2, 2")
    a(f"v_lshl_add_u32 v{VT}, v4, 2, v{VT}")
    a("s_lshl_b32 s35, s20, 5")
    a(f"v_add_u32 v{VT}, s35, v{VT}")
    a(f"v_lshlrev_b32 v{VT}, 6, v{VT}")
    a(f"v_bfe_u32 v{VT+1}, v2, 4, 1")
    a(f"v_lshl_add_u32 v{VT}, v{VT+1}, 5, v{VT}")
    a(f"v_and_b32 v{VT+1}, 3, v2")
    a(f"v_lshl_add_u32 v6, v{VT+1}, 3, v{VT}")
    a("s_barrier")
    steps = [(b, t) for b in range(9) for t in range(2)]

    def rdv(idx):
        b, t = steps[idx]
        f = VT + (idx % 2) * 4
        off = (32 * b + 16 * t) * 64
        a(f"ds_read_b64_tr_b16 v[{f}:{f+1}], v6 offset:{off}")
        a(f"ds_read_b64_tr_b16 v[{f+2}:{f+3}], v6 offset:{off + 512}")

    rdv(0)
    for idx, (b, t) in enumerate(steps):
        if idx + 1 < len(steps):
            rdv(idx + 1)
            a("s_waitcnt lgkmcnt(2)")
        else:
            a("s_waitcnt lgkmcnt(0)")
        f = VT + (idx % 2) * 4
        p = VP + 8 * b + 4 * t
        a(f"v_mfma_f32_32x32x16_bf16 v[{VO}:{VO+15}], v[{f}:{f+3}], v[{p}:{p+3}], v[{VO}:{VO+15}]")
    a("s_nop 15")
    a("s_nop 7")
    a(f"s_add_u32 s8, s26, {WS_OH}")
    a("s_addc_u32 s9, s27, 0")
    a(f"s_mov_b32 s10, {2048*9216}")
    a("s_movk_i32 s36, 9216")
    a("v_add_u32 v6, s32, v3")
    a("v_mul_lo_u32 v6, v6, s36")
    a("v_lshl_add_u32 v6, v4, 3, v6")
    a("v_add_u32 v6, s34, v6")
    for g in range(4):
        r = VO + 4 * g
        a(f"v_cvt_pk_bf16_f32 v{VT}, v{r}, v{r+1}")
        a(f"v_cvt_pk_bf16_f32 v{VT+1}, v{r+2}, v{r+3}")
        a(f"buffer_store_dwordx2 v[{VT}:{VT+1}], v6, s[8:11], 0 offen offset:{g*16}")
        a("s_nop 1")
    a.label(L("done"))
    a("s_endpgm")


def main():
    a = Asm()
    kernels = []
    emit_ln(a); kernels.append(("ln_kernel", 40, 512, 0))
    emit_gemm(a, "gemm1"); kernels.append(("gemm1_kernel", V_END, 1280, 65536))
    emit_attn(a); kernels.append(("attn_kernel", 256, 512, 24576))
    emit_gemm(a, "gemm2"); kernels.append(("gemm2_kernel", V_END, 128, 65536))
    hdr = "; generated by gen.py (own generator)\n"
    for n, v, g, lds in kernels:
        hdr += f"; @launch kernel={n} grid=({g},1,1) block=(256,1,1) lds={lds}\n"
    out = hdr + '.amdgcn_target "amdgcn-amd-amdhsa--gfx950"\n.text\n' + a.text()
    out += '.section .rodata,"a"\n'
    for n, v, g, lds in kernels:
        out += ".p2align 6\n" + kernel_desc(n, v)
    open(f"cdna_kernels/{NAME}.s", "w").write(out)


main()
```

```python
import sys, os
NAME = "parallel_sum__sliding_block__glu_gated_reglu__prompt"
WS_XN = 0
WS_QKV = 4 << 20
WS_OH = 16 << 20
WS_P = 64 << 20
EXP = os.environ.get("EXP", "")


class Asm:
    def __init__(self):
        self.lines = []
        self.nlab = 0

    def __call__(self, s):
        for l in s.strip("\n").split("\n"):
            self.lines.append("    " + l.strip())

    def label(self, l):
        self.lines.append(l + ":")

    def newlabel(self, p="L"):
        self.nlab += 1
        return f"{p}_{self.nlab}"

    def text(self):
        return "\n".join(self.lines) + "\n"


def kernel_begin(a, name):
    a.lines.append(f".globl {name}")
    a.lines.append(".p2align 8")
    a.lines.append(f".type {name},@function")
    a.label(name)


def kernel_desc(name, vgpr, sgpr=102):
    acc = (vgpr + 3) // 4 * 4
    acc = max(4, min(256, acc))
    return f""".amdhsa_kernel {name}
  .amdhsa_next_free_vgpr {vgpr}
  .amdhsa_next_free_sgpr {sgpr}
  .amdhsa_accum_offset {acc}
  .amdhsa_group_segment_fixed_size 0
  .amdhsa_kernarg_size 80
  .amdhsa_user_sgpr_count 2
  .amdhsa_user_sgpr_kernarg_segment_ptr 1
  .amdhsa_system_sgpr_workgroup_id_x 1
.end_amdhsa_kernel
"""


def srd(a, s, lo, hi, size):
    a(f"s_mov_b32 s{s}, s{lo}")
    a(f"s_mov_b32 s{s+1}, s{hi}")
    a(f"s_mov_b32 s{s+2}, {size}")
    a(f"s_mov_b32 s{s+3}, 0x00020000")


def bf16r(a, v):
    a(f"v_cvt_pk_bf16_f32 v{v}, v{v}, v{v}")
    a(f"v_lshlrev_b32 v{v}, 16, v{v}")


def emit_ln(a):
    kernel_begin(a, "ln_kernel")
    a("s_cmp_ge_u32 s2, 512")
    a("s_cbranch_scc1 L_ln_done")
    a("s_load_dwordx2 s[4:5], s[0:1], 0")
    a("s_load_dwordx2 s[6:7], s[0:1], 72")
    a("v_lshrrev_b32 v1, 6, v0")
    a("v_and_b32 v2, 63, v0")
    a("s_lshl_b32 s3, s2, 2")
    a("v_add_u32 v40, s3, v1")
    a("v_lshlrev_b32 v1, 11, v40")
    a("v_lshl_add_u32 v1, v2, 5, v1")
    a("v_xor_b32 v3, 32, v2")
    a("v_lshlrev_b32 v3, 2, v3")
    a("v_lshrrev_b32 v41, 8, v40")
    a("v_lshlrev_b32 v41, 5, v41")
    a("v_lshrrev_b32 v42, 1, v2")
    a("v_add_u32 v41, v41, v42")
    a("v_lshlrev_b32 v41, 8, v41")
    a("v_and_b32 v42, 255, v40")
    a("v_add_u32 v41, v41, v42")
    a("v_lshlrev_b32 v41, 6, v41")
    a("v_bfe_u32 v42, v40, 2, 2")
    a("v_and_b32 v43, 1, v2")
    a("v_lshlrev_b32 v43, 1, v43")
    a("v_xor_b32 v44, v43, v42")
    a("v_lshl_add_u32 v44, v44, 4, v41")
    a("v_or_b32 v43, 1, v43")
    a("v_xor_b32 v45, v43, v42")
    a("v_lshl_add_u32 v45, v45, 4, v41")
    a("s_waitcnt lgkmcnt(0)")
    srd(a, 8, 4, 5, 4194304)
    srd(a, 12, 6, 7, 4194304)
    a("buffer_load_dwordx4 v[4:7], v1, s[8:11], 0 offen")
    a("buffer_load_dwordx4 v[8:11], v1, s[8:11], 0 offen offset:16")
    a("s_waitcnt vmcnt(0)")
    for i in range(8):
        a(f"v_lshlrev_b32 v{16+2*i}, 16, v{4+i}")
        a(f"v_and_b32 v{17+2*i}, 0xffff0000, v{4+i}")
    a("v_add_f32 v32, v16, v17")
    for i in range(2, 16):
        a(f"v_add_f32 v32, v32, v{16+i}")

    def reduce(v):
        for m in (1, 2, 4, 8, 16):
            a(f"ds_swizzle_b32 v33, v{v} offset:{(m << 10) | 0x1f}")
            a("s_waitcnt lgkmcnt(0)")
            a(f"v_add_f32 v{v}, v{v}, v33")
        a(f"ds_bpermute_b32 v33, v3, v{v}")
        a("s_waitcnt lgkmcnt(0)")
        a(f"v_add_f32 v{v}, v{v}, v33")

    reduce(32)
    a("v_mul_f32 v32, 0x3a800000, v32")
    a("v_sub_f32 v35, v16, v32")
    a("v_mul_f32 v34, v35, v35")
    for i in range(1, 16):
        a(f"v_sub_f32 v35, v{16+i}, v32")
        a(f"v_fmac_f32 v34, v35, v35")
    reduce(34)
    a("v_mul_f32 v34, 0x3a800000, v34")
    bf16r(a, 32)
    bf16r(a, 34)
    a("v_add_f32 v34, 0x3727c5ac, v34")
    bf16r(a, 34)
    a("v_sqrt_f32 v34, v34")
    a("s_nop 0")
    bf16r(a, 34)
    a("v_rcp_f32 v34, v34")
    a("s_nop 0")
    for i in range(16):
        a(f"v_sub_f32 v{16+i}, v{16+i}, v32")
    for i in range(16):
        bf16r(a, 16 + i)
    for i in range(16):
        a(f"v_mul_f32 v{16+i}, v{16+i}, v34")
    for i in range(8):
        a(f"v_cvt_pk_bf16_f32 v{4+i}, v{16+2*i}, v{17+2*i}")
    a("buffer_store_dwordx4 v[4:7], v44, s[12:15], 0 offen")
    a("buffer_store_dwordx4 v[8:11], v45, s[12:15], 0 offen")
    a.label("L_ln_done")
    a("s_endpgm")


A_XOFF = 4
A_WOFF = 5
A_XRD = 10
A_WRD = 18
A_TMP = 30
A_FR = 36
A_ACC = 92
A_END = 252
STG = 36864


def emit_gemm1(a):
    name = "gemm1_kernel"
    kernel_begin(a, name)
    L = lambda s: f"L_g1_{s}"
    t = A_TMP
    a("s_cmp_ge_u32 s2, 256")
    a(f"s_cbranch_scc1 {L('done')}")
    a("s_load_dwordx2 s[4:5], s[0:1], 8")
    a("s_load_dwordx2 s[6:7], s[0:1], 32")
    a("s_load_dwordx2 s[24:25], s[0:1], 40")
    a("s_load_dwordx2 s[26:27], s[0:1], 72")
    a("v_lshrrev_b32 v1, 6, v0")
    a("v_and_b32 v2, 63, v0")
    a("s_nop 0")
    a("v_readfirstlane_b32 s20, v1")
    a("s_and_b32 s3, s2, 7")
    a("s_lshr_b32 s18, s2, 3")
    a("s_and_b32 s30, s18, 7")
    a("s_lshr_b32 s18, s18, 3")
    a("s_lshl_b32 s31, s3, 2")
    a("s_add_u32 s31, s31, s18")
    a("s_lshr_b32 s21, s20, 2")
    a("s_waitcnt lgkmcnt(0)")
    a("s_mov_b32 s8, s26")
    a("s_mov_b32 s9, s27")
    a("s_mov_b32 s10, 4194304")
    a("s_mov_b32 s11, 0x00020000")
    a("s_lshl_b32 s16, s30, 19")
    a("s_cmp_lt_u32 s31, 28")
    a(f"s_cbranch_scc0 {L('typeB')}")
    a("s_lshl_b32 s18, s31, 8")
    for s, (lo, hi, extra) in enumerate([(6, 7, 0), (24, 25, 0), (6, 7, 128), (24, 25, 128)]):
        b = 64 + 4 * s
        a(f"s_add_u32 s19, s18, {extra}")
        a(f"s_add_u32 s{b}, s{lo}, s19")
        a(f"s_addc_u32 s{b+1}, s{hi}, 0")
        a(f"s_sub_u32 s{b+2}, 7340032, s19")
        a(f"s_movk_i32 s{84+s}, 7168")
    a("s_lshl_b32 s19, s31, 7")
    a("s_add_u32 s80, s4, s19")
    a("s_addc_u32 s81, s5, 0")
    a("s_sub_u32 s82, 6291456, s19")
    a("s_movk_i32 s88, 6144")
    a(f"s_branch {L('wdone')}")
    a.label(L("typeB"))
    a("s_sub_u32 s18, s31, 28")
    a("s_mul_i32 s18, s18, 640")
    a("s_add_u32 s18, s18, 3584")
    for s in range(5):
        b = 64 + 4 * s
        a(f"s_add_u32 s19, s18, {128*s}")
        a(f"s_add_u32 s{b}, s4, s19")
        a(f"s_addc_u32 s{b+1}, s5, 0")
        a(f"s_sub_u32 s{b+2}, 6291456, s19")
        a(f"s_movk_i32 s{84+s}, 6144")
    a.label(L("wdone"))
    for s in range(5):
        a(f"s_mov_b32 s{67+4*s}, 0x00020000")
        a(f"s_mov_b32 s{90+s}, 0")
        a(f"s_lshl_b32 s{95+s}, s{84+s}, 5")
    a("s_lshl_b32 s35, s20, 11")
    a(f"v_lshl_add_u32 v{A_XOFF}, v2, 4, s35")
    a(f"v_lshrrev_b32 v{t}, 3, v2")
    a(f"v_and_b32 v{t+1}, 7, v2")
    a(f"v_lshrrev_b32 v{t+2}, 4, v2")
    a("s_and_b32 s35, s20, 3")
    a("s_lshl_b32 s23, s35, 10")
    a("s_lshl_b32 s35, s35, 3")
    a(f"v_add_u32 v{t+3}, s35, v{t}")
    a(f"v_and_b32 v{t+4}, 1, v{t+2}")
    a(f"v_lshlrev_b32 v{t+4}, 2, v{t+4}")
    a(f"v_xor_b32 v{t+4}, v{t+4}, v{t+1}")
    a(f"v_lshlrev_b32 v{t+4}, 4, v{t+4}")
    for s in range(5):
        a(f"v_mul_lo_u32 v{t+5}, v{t+3}, s{84+s}")
        a(f"v_add_u32 v{A_WOFF+s}, v{t+5}, v{t+4}")
    a(f"v_and_b32 v{t}, 31, v2")
    a(f"v_lshrrev_b32 v{t+1}, 5, v2")
    a("s_lshr_b32 s35, s20, 1")
    a("s_lshl_b32 s35, s35, 6")
    a(f"v_add_u32 v{t+2}, s35, v{t}")
    a(f"v_lshlrev_b32 v{t+2}, 6, v{t+2}")
    a(f"v_bfe_u32 v{t+3}, v{t}, 2, 2")
    for ks in range(2):
        a(f"v_or_b32 v{t+4}, {ks*2}, v{t+1}")
        a(f"v_xor_b32 v{t+4}, v{t+4}, v{t+3}")
        a(f"v_lshl_add_u32 v{A_XRD+ks}, v{t+4}, 4, v{t+2}")
        for sl in range(1, 4):
            a(f"v_add_u32 v{A_XRD+2*sl+ks}, {sl*STG}, v{A_XRD+ks}")
    a(f"v_bfe_u32 v{t}, v2, 2, 2")
    a(f"v_lshrrev_b32 v{t+1}, 5, v2")
    a(f"v_lshl_add_u32 v{t+1}, v{t+1}, 3, v{t}")
    a(f"v_lshlrev_b32 v{t+1}, 7, v{t+1}")
    a(f"v_and_b32 v{t+3}, 1, v2")
    a(f"v_lshl_add_u32 v{t+1}, v{t+3}, 3, v{t+1}")
    a(f"v_add_u32 v{t+1}, 16384, v{t+1}")
    a(f"v_bfe_u32 v{t+2}, v2, 4, 1")
    a(f"v_bfe_u32 v{t+3}, v2, 1, 1")
    a(f"v_lshl_add_u32 v{t+2}, v{t+2}, 1, v{t+3}")
    a(f"v_bfe_u32 v{t+3}, v2, 3, 1")
    a(f"v_lshlrev_b32 v{t+3}, 2, v{t+3}")
    a("s_and_b32 s35, s20, 1")
    a("s_lshl_b32 s36, s35, 13")
    a("s_lshl_b32 s35, s35, 2")
    for j in range(2):
        a(f"v_or_b32 v{t+4}, {4*j}, v{t+2}")
        a(f"v_xor_b32 v{t+4}, v{t+4}, v{t+3}")
        a(f"v_lshl_add_u32 v{A_WRD+j}, v{t+4}, 4, v{t+1}")
        a(f"v_add_u32 v{A_WRD+j}, s36, v{A_WRD+j}")
    a(f"v_or_b32 v{t+4}, s35, v{t+2}")
    a(f"v_xor_b32 v{t+4}, v{t+4}, v{t+3}")
    a(f"v_lshl_add_u32 v{A_WRD+2}, v{t+4}, 4, v{t+1}")
    a(f"v_add_u32 v{A_WRD+2}, {4*4096}, v{A_WRD+2}")
    for sl in range(1, 4):
        for j in range(3):
            a(f"v_add_u32 v{A_WRD+3*sl+j}, {sl*STG}, v{A_WRD+j}")
    for i in range(160):
        a(f"v_mov_b32 v{A_ACC+i}, 0")
    a("s_lshl_b32 s22, s20, 11")

    def dma_stage(sl, par, part):
        if part == 0:
            a(f"s_add_u32 m0, s22, {sl*STG}")
            a("s_nop 0")
            a(f"buffer_load_dwordx4 v{A_XOFF}, s[8:11], s16 offen lds")
            a(f"buffer_load_dwordx4 v{A_XOFF}, s[8:11], s16 offen offset:1024 lds")
        else:
            lab = a.newlabel("L_g1_d"); lab2 = a.newlabel("L_g1_e")
            a(f"s_cmp_eq_u32 s21, {par}")
            a(f"s_cbranch_scc0 {lab}")
            for s in range(3):
                a(f"s_add_u32 m0, s23, {sl*STG + 16384 + s*4096}")
                a("s_nop 0")
                a(f"buffer_load_dwordx4 v{A_WOFF+s}, s[{64+4*s}:{67+4*s}], s{90+s} offen lds")
            a(f"s_branch {lab2}")
            a.label(lab)
            for s in range(3, 5):
                a(f"s_add_u32 m0, s23, {sl*STG + 16384 + s*4096}")
                a("s_nop 0")
                a(f"buffer_load_dwordx4 v{A_WOFF+s}, s[{64+4*s}:{67+4*s}], s{90+s} offen lds")
            a.label(lab2)

    def adv():
        a("s_add_u32 s16, s16, 16384")
        for s in range(5):
            a(f"s_add_u32 s{90+s}, s{90+s}, s{95+s}")

    def reads(sl, ks, fs):
        fb = A_FR + fs * 28
        for q in range(5):
            wf = fb + q * 4
            if q < 4:
                ad = A_WRD + 3 * sl + (q & 1); base = (q >> 1) * 4096
            else:
                ad = A_WRD + 3 * sl + 2; base = 0
            for hh in range(2):
                a(f"ds_read_b64_tr_b16 v[{wf+2*hh}:{wf+2*hh+1}], v{ad} offset:{base + (ks*16 + hh*4)*128}")
        for mt in range(2):
            xf = fb + 20 + mt * 4
            a(f"ds_read_b128 v[{xf}:{xf+3}], v{A_XRD + 2*sl + ks} offset:{mt*2048}")

    def mfmas(fs, lo, hi):
        fb = A_FR + fs * 28
        k = 0
        for mt in range(2):
            for q in range(5):
                if lo <= k < hi:
                    d = A_ACC + (q * 2 + mt) * 16
                    a(f"v_mfma_f32_32x32x16_bf16 v[{d}:{d+15}], v[{fb+q*4}:{fb+q*4+3}], v[{fb+20+mt*4}:{fb+20+mt*4+3}], v[{d}:{d+15}]")
                k += 1

    def step(sl, do_dma, last):
        reads(sl, 1, 1)
        a("s_waitcnt lgkmcnt(12)")
        mfmas(0, 0, 5)
        if do_dma:
            dma_stage((sl + 3) % 4, (sl + 3) % 2, 0)
        mfmas(0, 5, 10)
        if do_dma:
            dma_stage((sl + 3) % 4, (sl + 3) % 2, 1)
            adv()
        if not last:
            reads((sl + 1) % 4, 0, 0)
            a("s_waitcnt lgkmcnt(12)")
        else:
            a("s_waitcnt lgkmcnt(0)")
        mfmas(1, 0, 10)

    for st in range(3):
        dma_stage(st, st % 2, 0)
        dma_stage(st, st % 2, 1)
        adv()
    a("s_waitcnt vmcnt(4)")
    a("s_barrier")
    reads(0, 0, 0)
    a("s_movk_i32 s37, 7")
    a.label(L("loop"))
    for sl in range(4):
        step(sl, True, False)
        a("s_waitcnt vmcnt(4)")
        a("s_barrier")
    a("s_sub_u32 s37, s37, 1")
    a("s_cmp_lg_u32 s37, 0")
    a(f"s_cbranch_scc1 {L('loop')}")
    step(0, True, False)
    a("s_waitcnt vmcnt(4)")
    a("s_barrier")
    step(1, False, False)
    a("s_waitcnt vmcnt(0)")
    a("s_barrier")
    step(2, False, False)
    a("s_barrier")
    step(3, False, True)
    a("s_nop 15")
    a("s_nop 7")
    a("s_barrier")
    a(f"v_and_b32 v{t}, 31, v2")
    a(f"v_lshrrev_b32 v{t+1}, 5, v2")
    a(f"v_lshlrev_b32 v4, 6, v{t}")
    a(f"v_lshl_add_u32 v4, v{t+1}, 3, v4")
    a("s_lshl_b32 s35, s20, 13")
    a(f"v_add_u32 v4, s35, v4")
    a(f"v_bfe_u32 v{t+2}, v{t}, 2, 2")
    for g in range(4):
        a(f"v_xor_b32 v{t+3}, {g}, v{t+2}")
        a(f"v_lshl_add_u32 v{5+g}, v{t+3}, 4, v4")
    a(f"v_lshlrev_b32 v9, 4, v2")
    a(f"v_add_u32 v10, s35, v9")
    a(f"s_add_u32 s8, s26, {WS_QKV}")
    a("s_addc_u32 s9, s27, 0")
    a(f"s_mov_b32 s10, {96*2048*64}")
    a(f"s_add_u32 s12, s26, {WS_OH}")
    a("s_addc_u32 s13, s27, 0")
    a(f"s_mov_b32 s14, {8*144*256*64}")
    a("s_mov_b32 s15, 0x00020000")
    a("s_lshr_b32 s35, s20, 1")
    a("s_lshl_b32 s39, s35, 12")
    cnt = [0]

    def flush(buf, sr, sreg):
        tb = A_FR + (cnt[0] % 2) * 16
        cnt[0] += 1
        a("s_waitcnt lgkmcnt(0)")
        for i in range(4):
            a(f"ds_read_b128 v[{tb+4*i}:{tb+4*i+3}], v10 offset:{buf*4096 + i*1024}")
        a("s_waitcnt lgkmcnt(0)")
        for i in range(4):
            a(f"buffer_store_dwordx4 v[{tb+4*i}:{tb+4*i+3}], v9, s[{sr}:{sr+3}], s{sreg} offen offset:{i*1024}")

    def q_store(q, sreg, buf):
        for mt in range(2):
            for g in range(4):
                r = A_ACC + (q * 2 + mt) * 16 + 4 * g
                a(f"v_cvt_pk_bf16_f32 v{t+2}, v{r}, v{r+1}")
                a(f"v_cvt_pk_bf16_f32 v{t+3}, v{r+2}, v{r+3}")
                a(f"ds_write_b64 v4, v[{t+2}:{t+3}] offset:{buf*4096 + mt*2048 + g*16}")
        flush(buf, 8, sreg)

    def gu_store(qg, qu, sreg, buf):
        for mt in range(2):
            for g in range(4):
                rg = A_ACC + (qg * 2 + mt) * 16 + 4 * g
                ru = A_ACC + (qu * 2 + mt) * 16 + 4 * g
                a(f"v_cvt_pk_bf16_f32 v{t+2}, v{rg}, v{rg+1}")
                a(f"v_cvt_pk_bf16_f32 v{t+3}, v{rg+2}, v{rg+3}")
                a(f"v_cvt_pk_bf16_f32 v{t+4}, v{ru}, v{ru+1}")
                a(f"v_cvt_pk_bf16_f32 v{t+5}, v{ru+2}, v{ru+3}")
                a(f"v_lshlrev_b32 v{rg}, 16, v{t+2}")
                a(f"v_and_b32 v{rg+1}, 0xffff0000, v{t+2}")
                a(f"v_lshlrev_b32 v{rg+2}, 16, v{t+3}")
                a(f"v_and_b32 v{rg+3}, 0xffff0000, v{t+3}")
                a(f"v_lshlrev_b32 v{ru}, 16, v{t+4}")
                a(f"v_and_b32 v{ru+1}, 0xffff0000, v{t+4}")
                a(f"v_lshlrev_b32 v{ru+2}, 16, v{t+5}")
                a(f"v_and_b32 v{ru+3}, 0xffff0000, v{t+5}")
                for i in range(4):
                    a(f"v_max_f32 v{rg+i}, 0, v{rg+i}")
                for i in range(4):
                    a(f"v_mul_f32 v{rg+i}, v{rg+i}, v{ru+i}")
                a(f"v_cvt_pk_bf16_f32 v{t+2}, v{rg}, v{rg+1}")
                a(f"v_cvt_pk_bf16_f32 v{t+3}, v{rg+2}, v{rg+3}")
                a(f"ds_write_b64 v{5+g}, v[{t+2}:{t+3}] offset:{buf*4096 + mt*2048}")
        flush(buf, 12, sreg)

    a("s_and_b32 s38, s20, 1")
    a("s_cmp_lt_u32 s31, 28")
    a(f"s_cbranch_scc0 {L('epiB')}")
    a("s_mul_i32 s35, s30, 144")
    a("s_lshl_b32 s36, s31, 2")
    a("s_add_u32 s35, s35, s36")
    a("s_lshl_b32 s36, s38, 1")
    a("s_add_u32 s35, s35, s36")
    a("s_add_u32 s35, s35, 32")
    a("s_lshl_b32 s35, s35, 14")
    a("s_add_u32 s35, s35, s39")
    gu_store(0, 2, 35, 0)
    a("s_add_u32 s36, s35, 16384")
    gu_store(1, 3, 36, 1)
    a("s_lshl_b32 s35, s31, 1")
    a("s_add_u32 s35, s35, s38")
    a("s_lshl_b32 s35, s35, 17")
    a("s_lshl_b32 s36, s30, 14")
    a("s_add_u32 s35, s35, s36")
    a("s_add_u32 s35, s35, s39")
    q_store(4, 35, 0)
    a(f"s_branch {L('done')}")
    a.label(L("epiB"))
    a("s_sub_u32 s18, s31, 28")
    a("s_mul_i32 s18, s18, 10")
    a("s_add_u32 s18, s18, 56")
    a("s_lshl_b32 s19, s30, 14")
    a("s_add_u32 s19, s19, s39")
    for q in range(4):
        a("s_lshl_b32 s36, s38, 2")
        a("s_add_u32 s35, s18, s36")
        a(f"s_add_u32 s35, s35, {q}")
        a("s_lshl_b32 s35, s35, 17")
        a("s_add_u32 s35, s35, s19")
        q_store(q, 35, q % 2)
    a("s_add_u32 s35, s18, s38")
    a("s_add_u32 s35, s35, 8")
    a("s_lshl_b32 s35, s35, 17")
    a("s_add_u32 s35, s35, s19")
    q_store(4, 35, 0)
    a.label(L("done"))
    a("s_endpgm")


def emit_attn(a):
    kernel_begin(a, "attn_kernel")
    L = lambda s: f"L_attn_{s}"
    VQ = 8; VK = 16; VS = 88; VO = 232; VP = 16; VT = 248
    a("s_cmp_ge_u32 s2, 512")
    a(f"s_cbranch_scc1 {L('done')}")
    a("s_load_dwordx2 s[26:27], s[0:1], 72")
    a("v_lshrrev_b32 v1, 6, v0")
    a("v_and_b32 v2, 63, v0")
    a("s_nop 0")
    a("v_readfirstlane_b32 s20, v1")
    a("s_and_b32 s30, s2, 31")
    a("s_lshr_b32 s31, s2, 5")
    a("s_waitcnt lgkmcnt(0)")
    a(f"s_add_u32 s8, s26, {WS_QKV}")
    a("s_addc_u32 s9, s27, 0")
    a(f"s_mov_b32 s10, {96*131072}")
    a("s_mov_b32 s11, 0x00020000")
    a("v_and_b32 v3, 31, v2")
    a("v_lshrrev_b32 v4, 5, v2")
    a("v_xor_b32 v5, 32, v2")
    a("v_lshlrev_b32 v5, 2, v5")
    a("s_lshl_b32 s32, s31, 7")
    a("s_lshl_b32 s33, s20, 5")
    a("s_add_u32 s32, s32, s33")
    a("s_lshl_b32 s34, s30, 17")
    a("s_lshl_b32 s35, s31, 13")
    a("s_add_u32 s35, s35, s34")
    a(f"s_add_u32 s35, s35, {64*131072 - 256*64}")
    a("s_mul_i32 s38, s20, 6144")
    a("s_add_u32 s35, s35, s38")
    a(f"v_lshl_add_u32 v{VT}, v2, 4, s35")
    for j in range(6):
        a(f"s_add_u32 m0, s38, {j*1024}")
        if j:
            a(f"v_add_u32 v{VT}, 1024, v{VT}")
        else:
            a("s_nop 0")
        a(f"buffer_load_dwordx4 v{VT}, s[8:11], 0 offen lds")
    a("v_add_u32 v6, s32, v3")
    a("v_lshlrev_b32 v6, 6, v6")
    a("v_lshl_add_u32 v6, v4, 4, v6")
    a("v_add_u32 v6, s34, v6")
    a(f"buffer_load_dwordx4 v[{VQ}:{VQ+3}], v6, s[8:11], 0 offen")
    a(f"buffer_load_dwordx4 v[{VQ+4}:{VQ+7}], v6, s[8:11], 0 offen offset:32")
    a(f"v_add_u32 v7, {32*131072 - 256*64}, v6")
    for b in range(9):
        a(f"buffer_load_dwordx4 v[{VK+8*b}:{VK+8*b+3}], v7, s[8:11], 0 offen")
        a(f"buffer_load_dwordx4 v[{VK+8*b+4}:{VK+8*b+7}], v7, s[8:11], 0 offen offset:32")
        if b < 8:
            a(f"v_add_u32 v7, 2048, v7")
    for i in range(144):
        a(f"v_mov_b32 v{VS+i}, 0")
    for i in range(16):
        a(f"v_mov_b32 v{VO+i}, 0")
    a(f"v_lshlrev_b32 v{VT}, 2, v4")
    a(f"v_sub_u32 v{VT}, v3, v{VT}")
    for r in range(16):
        c = 8 * (r // 4) + (r % 4)
        a(f"v_cmp_gt_i32 s[{40+2*r}:{41+2*r}], {c}, v{VT}")
    a("s_waitcnt vmcnt(0)")
    for b in range(9):
        d = VS + 16 * b
        a(f"v_mfma_f32_32x32x16_bf16 v[{d}:{d+15}], v[{VK+8*b}:{VK+8*b+3}], v[{VQ}:{VQ+3}], v[{d}:{d+15}]")
    for b in range(9):
        d = VS + 16 * b
        a(f"v_mfma_f32_32x32x16_bf16 v[{d}:{d+15}], v[{VK+8*b+4}:{VK+8*b+7}], v[{VQ+4}:{VQ+7}], v[{d}:{d+15}]")
    a("s_nop 15")
    a("s_nop 7")
    a("s_mov_b32 s37, 0x3e3504f3")
    for i in range(0, 144, 2):
        r = VS + i
        a(f"v_cvt_pk_bf16_f32 v{VT}, v{r}, v{r+1}")
        a(f"v_lshlrev_b32 v{r}, 16, v{VT}")
        a(f"v_and_b32 v{r+1}, 0xffff0000, v{VT}")
        a(f"v_mul_f32 v{r}, s37, v{r}")
        a(f"v_mul_f32 v{r+1}, s37, v{r+1}")
        a(f"v_cvt_pk_bf16_f32 v{VT}, v{r}, v{r+1}")
        a(f"v_lshlrev_b32 v{r}, 16, v{VT}")
        a(f"v_and_b32 v{r+1}, 0xffff0000, v{VT}")
    a("s_mov_b32 s37, 0xce6e6b28")
    a(f"v_mov_b32 v{VT}, s37")
    for r in range(16):
        a(f"v_cndmask_b32 v{VS+r}, v{VT}, v{VS+r}, s[{40+2*r}:{41+2*r}]")
        a(f"v_cndmask_b32 v{VS+128+r}, v{VS+128+r}, v{VT}, s[{40+2*r}:{41+2*r}]")
    a("s_lshr_b32 s35, s32, 5")
    a("s_sub_i32 s35, 8, s35")
    for b in range(8):
        a(f"s_cmp_gt_i32 s35, {b}")
        a(f"s_cbranch_scc0 {L('nbdone')}")
        for r in range(16):
            a(f"v_mov_b32 v{VS+16*b+r}, v{VT}")
    a.label(L("nbdone"))
    a(f"v_max_f32 v{VT+1}, v{VS}, v{VS+1}")
    for i in range(2, 144, 2):
        a(f"v_max3_f32 v{VT+1}, v{VT+1}, v{VS+i}, v{VS+i+1}")
    a(f"ds_bpermute_b32 v{VT+2}, v5, v{VT+1}")
    a("s_waitcnt lgkmcnt(0)")
    a(f"v_max_f32 v{VT+1}, v{VT+1}, v{VT+2}")
    a("s_mov_b32 s37, 0x3fb8aa3b")
    a(f"v_mul_f32 v{VT+1}, s37, v{VT+1}")
    for i in range(144):
        a(f"v_fma_f32 v{VS+i}, v{VS+i}, s37, -v{VT+1}")
    for i in range(144):
        a(f"v_exp_f32 v{VS+i}, v{VS+i}")
    a("s_nop 0")
    a(f"v_add_f32 v{VT+2}, v{VS}, v{VS+1}")
    for i in range(2, 144):
        a(f"v_add_f32 v{VT+2}, v{VT+2}, v{VS+i}")
    a(f"ds_bpermute_b32 v{VT+3}, v5, v{VT+2}")
    a("s_waitcnt lgkmcnt(0)")
    a(f"v_add_f32 v{VT+2}, v{VT+2}, v{VT+3}")
    a(f"v_rcp_f32 v{VT+2}, v{VT+2}")
    a("s_nop 0")
    for i in range(0, 144, 2):
        a(f"v_mul_f32 v{VS+i}, v{VS+i}, v{VT+2}")
        a(f"v_mul_f32 v{VS+i+1}, v{VS+i+1}, v{VT+2}")
        a(f"v_cvt_pk_bf16_f32 v{VP+i//2}, v{VS+i}, v{VS+i+1}")
    a(f"v_bfe_u32 v{VT}, v2, 2, 2")
    a(f"v_lshl_add_u32 v{VT}, v4, 2, v{VT}")
    a("s_lshl_b32 s35, s20, 5")
    a(f"v_add_u32 v{VT}, s35, v{VT}")
    a(f"v_lshlrev_b32 v{VT}, 6, v{VT}")
    a(f"v_bfe_u32 v{VT+1}, v2, 4, 1")
    a(f"v_lshl_add_u32 v{VT}, v{VT+1}, 5, v{VT}")
    a(f"v_and_b32 v{VT+1}, 3, v2")
    a(f"v_lshl_add_u32 v6, v{VT+1}, 3, v{VT}")
    a("s_barrier")
    steps = [(b, t) for b in range(9) for t in range(2)]

    def rdv(idx):
        b, t = steps[idx]
        f = VT + (idx % 2) * 4
        off = (32 * b + 16 * t) * 64
        a(f"ds_read_b64_tr_b16 v[{f}:{f+1}], v6 offset:{off}")
        a(f"ds_read_b64_tr_b16 v[{f+2}:{f+3}], v6 offset:{off + 512}")

    rdv(0)
    for idx, (b, t) in enumerate(steps):
        if idx + 1 < len(steps):
            rdv(idx + 1)
            a("s_waitcnt lgkmcnt(2)")
        else:
            a("s_waitcnt lgkmcnt(0)")
        f = VT + (idx % 2) * 4
        p = VP + 8 * b + 4 * t
        a(f"v_mfma_f32_32x32x16_bf16 v[{VO}:{VO+15}], v[{f}:{f+3}], v[{p}:{p+3}], v[{VO}:{VO+15}]")
    a("s_nop 15")
    a("s_nop 7")
    a(f"s_add_u32 s8, s26, {WS_OH}")
    a("s_addc_u32 s9, s27, 0")
    a(f"s_mov_b32 s10, {8*144*256*64}")
    a("s_lshr_b32 s35, s32, 8")
    a("s_mul_i32 s35, s35, 144")
    a("s_add_u32 s35, s35, s30")
    a("s_lshl_b32 s35, s35, 14")
    a("s_and_b32 s36, s32, 255")
    a("s_lshl_b32 s36, s36, 6")
    a("s_add_u32 s35, s35, s36")
    a("v_lshlrev_b32 v6, 6, v3")
    a("v_lshl_add_u32 v6, v4, 3, v6")
    a("v_add_u32 v6, s35, v6")
    a("v_bfe_u32 v7, v3, 2, 2")
    for g in range(4):
        r = VO + 4 * g
        a(f"v_xor_b32 v{VT+2}, {g}, v7")
        a(f"v_lshl_add_u32 v{VT+2}, v{VT+2}, 4, v6")
        a(f"v_cvt_pk_bf16_f32 v{VT}, v{r}, v{r+1}")
        a(f"v_cvt_pk_bf16_f32 v{VT+1}, v{r+2}, v{r+3}")
        a(f"buffer_store_dwordx2 v[{VT}:{VT+1}], v{VT+2}, s[8:11], 0 offen")
        a("s_nop 1")
    a.label(L("done"))
    a("s_endpgm")


B_XOFF = 4
B_WOFF = 5
B_XRD = 6
B_WRD = 12
B_TMP = 18
B_FR = 24
B_ACC = 56
B_END = 120
STG2 = 49152


def emit_gemm2(a):
    name = "gemm2_kernel"
    kernel_begin(a, name)
    L = lambda s: f"L_g2_{s}"
    t = B_TMP
    a("s_cmp_ge_u32 s2, 256")
    a(f"s_cbranch_scc1 {L('done')}")
    a("s_load_dwordx2 s[4:5], s[0:1], 16")
    a("s_load_dwordx2 s[6:7], s[0:1], 48")
    a("s_load_dwordx2 s[26:27], s[0:1], 72")
    a("v_lshrrev_b32 v1, 6, v0")
    a("v_and_b32 v2, 63, v0")
    a("s_nop 0")
    a("v_readfirstlane_b32 s20, v1")
    a("s_bfe_u32 s38, s2, 0x20001")
    a("s_and_b32 s30, s2, 1")
    a("s_lshl_b32 s30, s30, 2")
    a("s_bfe_u32 s31, s2, 0x20003")
    a("s_add_u32 s30, s30, s31")
    a("s_lshr_b32 s31, s2, 5")
    a("s_waitcnt lgkmcnt(0)")
    a(f"s_add_u32 s8, s26, {WS_OH}")
    a("s_addc_u32 s9, s27, 0")
    a(f"s_mov_b32 s10, {8*144*16384}")
    a("s_mov_b32 s11, 0x00020000")
    a("s_mul_i32 s16, s30, 144")
    a("s_mul_i32 s18, s38, 36")
    a("s_add_u32 s16, s16, s18")
    a("s_lshl_b32 s16, s16, 14")
    a("s_lshr_b32 s21, s20, 2")
    a("s_lshl_b32 s18, s31, 8")
    a("s_lshl_b32 s19, s21, 7")
    a("s_add_u32 s18, s18, s19")
    a("s_add_u32 s12, s4, s18")
    a("s_addc_u32 s13, s5, 0")
    a("s_sub_u32 s14, 2097152, s18")
    a("s_add_u32 s32, s6, s18")
    a("s_addc_u32 s33, s7, 0")
    a("s_sub_u32 s34, 7340032, s18")
    a("s_mov_b32 s15, 0x00020000")
    a("s_mov_b32 s17, 0")
    a("s_mov_b32 s39, 0")
    a("s_cmp_eq_u32 s38, 0")
    a(f"s_cbranch_scc1 {L('k0')}")
    a("s_mul_i32 s19, s38, 36")
    a("s_sub_u32 s19, s19, 32")
    a("s_lshl_b32 s19, s19, 16")
    a("s_add_u32 s12, s32, s19")
    a("s_addc_u32 s13, s33, 0")
    a("s_sub_u32 s14, s34, s19")
    a("s_movk_i32 s39, 1000")
    a.label(L("k0"))
    a("s_lshl_b32 s35, s20, 11")
    a(f"v_lshl_add_u32 v{B_XOFF}, v2, 4, s35")
    a(f"v_lshrrev_b32 v{t}, 3, v2")
    a(f"v_and_b32 v{t+1}, 7, v2")
    a(f"v_lshrrev_b32 v{t+2}, 4, v2")
    a("s_and_b32 s35, s20, 3")
    a("s_lshl_b32 s35, s35, 3")
    a(f"v_add_u32 v{t+3}, s35, v{t}")
    a(f"v_lshlrev_b32 v{t+3}, 11, v{t+3}")
    a(f"v_and_b32 v{t+4}, 1, v{t+2}")
    a(f"v_lshlrev_b32 v{t+4}, 2, v{t+4}")
    a(f"v_xor_b32 v{t+4}, v{t+4}, v{t+1}")
    a(f"v_lshl_add_u32 v{B_WOFF}, v{t+4}, 4, v{t+3}")
    a(f"v_and_b32 v{t}, 31, v2")
    a(f"v_lshrrev_b32 v{t+1}, 5, v2")
    a("s_lshr_b32 s35, s20, 1")
    a("s_lshl_b32 s35, s35, 6")
    a(f"v_add_u32 v{t+2}, s35, v{t}")
    a(f"v_lshlrev_b32 v{t+2}, 6, v{t+2}")
    a(f"v_bfe_u32 v{t+3}, v{t}, 2, 2")
    for ks in range(2):
        a(f"v_or_b32 v{t+4}, {ks*2}, v{t+1}")
        a(f"v_xor_b32 v{t+4}, v{t+4}, v{t+3}")
        a(f"v_lshl_add_u32 v{B_XRD+ks}, v{t+4}, 4, v{t+2}")
        for sl in range(1, 3):
            a(f"v_add_u32 v{B_XRD+2*sl+ks}, {sl*STG2}, v{B_XRD+ks}")
    a(f"v_bfe_u32 v{t}, v2, 2, 2")
    a(f"v_lshrrev_b32 v{t+1}, 5, v2")
    a(f"v_lshl_add_u32 v{t+1}, v{t+1}, 3, v{t}")
    a(f"v_lshlrev_b32 v{t+1}, 7, v{t+1}")
    a(f"v_and_b32 v{t+3}, 1, v2")
    a(f"v_lshl_add_u32 v{t+1}, v{t+3}, 3, v{t+1}")
    a(f"v_add_u32 v{t+1}, 32768, v{t+1}")
    a(f"v_bfe_u32 v{t+2}, v2, 4, 1")
    a(f"v_bfe_u32 v{t+3}, v2, 1, 1")
    a(f"v_lshl_add_u32 v{t+2}, v{t+2}, 1, v{t+3}")
    a(f"v_bfe_u32 v{t+3}, v2, 3, 1")
    a(f"v_lshlrev_b32 v{t+3}, 2, v{t+3}")
    a("s_and_b32 s35, s20, 1")
    a("s_lshl_b32 s36, s35, 12")
    for j in range(2):
        a(f"v_or_b32 v{t+4}, {4*j}, v{t+2}")
        a(f"v_xor_b32 v{t+4}, v{t+4}, v{t+3}")
        a(f"v_lshl_add_u32 v{B_WRD+j}, v{t+4}, 4, v{t+1}")
        a(f"v_add_u32 v{B_WRD+j}, s36, v{B_WRD+j}")
        for sl in range(1, 3):
            a(f"v_add_u32 v{B_WRD+2*sl+j}, {sl*STG2}, v{B_WRD+j}")
    for i in range(64):
        a(f"v_mov_b32 v{B_ACC+i}, 0")
    a("s_lshl_b32 s22, s20, 11")
    a("s_and_b32 s35, s20, 3")
    a("s_lshl_b32 s23, s35, 10")
    a("s_lshl_b32 s35, s21, 12")
    a("s_add_u32 s23, s23, s35")

    def dma_kblk(sl, kb):
        a(f"s_add_u32 m0, s22, {sl*STG2 + kb*16384}")
        a("s_nop 0")
        a(f"buffer_load_dwordx4 v{B_XOFF}, s[8:11], s16 offen lds")
        a(f"buffer_load_dwordx4 v{B_XOFF}, s[8:11], s16 offen offset:1024 lds")
        a(f"s_add_u32 m0, s23, {sl*STG2 + 32768 + kb*8192}")
        a("s_add_u32 s16, s16, 16384")
        a(f"buffer_load_dwordx4 v{B_WOFF}, s[12:15], s17 offen lds")
        a("s_add_u32 s17, s17, 65536")
        a("s_add_u32 s39, s39, 1")
        a("s_cmp_eq_u32 s39, 32")
        a("s_cselect_b32 s12, s32, s12")
        a("s_cselect_b32 s13, s33, s13")
        a("s_cselect_b32 s14, s34, s14")
        a("s_cselect_b32 s17, 0, s17")

    def reads(sl, ss, fs):
        kb, ks = ss >> 1, ss & 1
        fb = B_FR + fs * 16
        for q in range(2):
            for hh in range(2):
                a(f"ds_read_b64_tr_b16 v[{fb+q*4+2*hh}:{fb+q*4+2*hh+1}], v{B_WRD+2*sl+q} offset:{kb*8192 + (ks*16 + hh*4)*128}")
        for mt in range(2):
            a(f"ds_read_b128 v[{fb+8+mt*4}:{fb+8+mt*4+3}], v{B_XRD+2*sl+ks} offset:{kb*16384 + mt*2048}")

    def mfmas(fs):
        fb = B_FR + fs * 16
        for q in range(2):
            for mt in range(2):
                d = B_ACC + (q * 2 + mt) * 16
                a(f"v_mfma_f32_32x32x16_bf16 v[{d}:{d+15}], v[{fb+q*4}:{fb+q*4+3}], v[{fb+8+mt*4}:{fb+8+mt*4+3}], v[{d}:{d+15}]")

    def step(sl, do_dma):
        reads(sl, 0, 0)
        for ss in range(4):
            if ss < 3:
                reads(sl, ss + 1, (ss + 1) % 2)
                a("s_waitcnt lgkmcnt(6)")
            else:
                a("s_waitcnt lgkmcnt(0)")
            mfmas(ss % 2)
            if do_dma and ss < 2:
                dma_kblk((sl + 2) % 3, ss)

    for st in range(2):
        dma_kblk(st, 0)
        dma_kblk(st, 1)
    a("s_waitcnt vmcnt(6)")
    a("s_barrier")
    a("s_movk_i32 s37, 5")
    a.label(L("loop"))
    for sl in range(3):
        step(sl, True)
        a("s_waitcnt vmcnt(6)")
        a("s_barrier")
    a("s_sub_u32 s37, s37, 1")
    a("s_cmp_lg_u32 s37, 0")
    a(f"s_cbranch_scc1 {L('loop')}")
    step(0, True)
    a("s_waitcnt vmcnt(6)")
    a("s_barrier")
    step(1, False)
    a("s_waitcnt vmcnt(0)")
    a("s_barrier")
    step(2, False)
    a("s_nop 15")
    a("s_nop 7")
    a(f"s_add_u32 s8, s26, {WS_P}")
    a("s_addc_u32 s9, s27, 0")
    a(f"s_mov_b32 s10, {4*64*8*16384}")
    a("s_lshl_b32 s35, s38, 6")
    a("s_lshl_b32 s36, s30, 3")
    a("s_add_u32 s35, s35, s36")
    a("s_add_u32 s35, s35, s31")
    a("s_lshl_b32 s35, s35, 3")
    a("s_add_u32 s35, s35, s20")
    a("s_lshl_b32 s35, s35, 14")
    a(f"v_lshlrev_b32 v{t}, 4, v2")
    for i in range(16):
        r = B_ACC + 4 * i
        a(f"buffer_store_dwordx4 v[{r}:{r+3}], v{t}, s[8:11], s35 offen offset:{i*1024}" if i < 4 else
          f"buffer_store_dwordx4 v[{r}:{r+3}], v{t+1+(i//4-1)}, s[8:11], s35 offen offset:{(i%4)*1024}")
        if i % 4 == 3 and i < 15:
            a(f"v_add_u32 v{t+1+i//4}, {4096*(i//4+1)}, v{t}")
    a.label(L("done"))
    a("s_endpgm")


def emit_combine(a):
    kernel_begin(a, "comb_kernel")
    a("s_cmp_ge_u32 s2, 512")
    a("s_cbranch_scc1 L_comb_done")
    a("s_load_dwordx2 s[4:5], s[0:1], 0")
    a("s_load_dwordx2 s[6:7], s[0:1], 56")
    a("s_load_dwordx2 s[26:27], s[0:1], 72")
    a("v_lshrrev_b32 v1, 6, v0")
    a("v_and_b32 v2, 63, v0")
    a("s_nop 0")
    a("v_readfirstlane_b32 s20, v1")
    a("s_lshl_b32 s3, s2, 2")
    a("s_add_u32 s3, s3, s20")
    a("s_lshl_b32 s3, s3, 12")
    a("v_lshlrev_b32 v3, 4, v2")
    a("s_waitcnt lgkmcnt(0)")
    srd(a, 8, 4, 5, 4194304)
    srd(a, 12, 6, 7, 4194304)
    a(f"s_add_u32 s16, s26, {WS_P}")
    a("s_addc_u32 s17, s27, 0")
    a(f"s_mov_b32 s18, {4*64*8*16384}")
    a("s_mov_b32 s19, 0x00020000")
    for ks in range(4):
        a(f"s_add_u32 s21, s3, {ks*64*8*16384}")
        for g in range(4):
            a(f"buffer_load_dwordx4 v[{16+16*ks+4*g}:{16+16*ks+4*g+3}], v3, s[16:19], s21 offen offset:{g*1024}")
    a("s_lshr_b32 s22, s2, 6")
    a("s_bfe_u32 s23, s2, 0x30003")
    a("s_bfe_u32 s24, s2, 0x20001")
    a("s_and_b32 s25, s2, 1")
    a("s_lshr_b32 s28, s20, 1")
    a("s_and_b32 s29, s20, 1")
    a("s_lshl_b32 s30, s22, 8")
    a("s_lshl_b32 s31, s24, 6")
    a("s_add_u32 s30, s30, s31")
    a("s_lshl_b32 s31, s29, 5")
    a("s_add_u32 s30, s30, s31")
    a("s_lshl_b32 s31, s23, 7")
    a("s_lshl_b32 s32, s25, 6")
    a("s_add_u32 s31, s31, s32")
    a("s_lshl_b32 s32, s28, 5")
    a("s_add_u32 s31, s31, s32")
    a("v_and_b32 v4, 31, v2")
    a("v_lshrrev_b32 v5, 5, v2")
    a("v_add_u32 v4, s30, v4")
    a("v_lshlrev_b32 v4, 11, v4")
    a("v_lshl_add_u32 v5, v5, 2, s31")
    a("v_lshl_add_u32 v4, v5, 1, v4")
    for g in range(4):
        a(f"buffer_load_dwordx2 v[{8+2*g}:{9+2*g}], v4, s[8:11], 0 offen offset:{g*16}")
    a("s_waitcnt vmcnt(0)")
    for i in range(16):
        a(f"v_add_f32 v{16+i}, v{16+i}, v{32+i}")
        a(f"v_add_f32 v{48+i}, v{48+i}, v{64+i}")
    for i in range(16):
        a(f"v_add_f32 v{16+i}, v{16+i}, v{48+i}")
    for g in range(4):
        a(f"v_lshlrev_b32 v{32+4*g}, 16, v{8+2*g}")
        a(f"v_and_b32 v{33+4*g}, 0xffff0000, v{8+2*g}")
        a(f"v_lshlrev_b32 v{34+4*g}, 16, v{9+2*g}")
        a(f"v_and_b32 v{35+4*g}, 0xffff0000, v{9+2*g}")
    for i in range(16):
        a(f"v_add_f32 v{16+i}, v{16+i}, v{32+i}")
    for g in range(4):
        a(f"v_cvt_pk_bf16_f32 v{8+2*g}, v{16+4*g}, v{17+4*g}")
        a(f"v_cvt_pk_bf16_f32 v{9+2*g}, v{18+4*g}, v{19+4*g}")
        a(f"buffer_store_dwordx2 v[{8+2*g}:{9+2*g}], v4, s[12:15], 0 offen offset:{g*16}")
    a.label("L_comb_done")
    a("s_endpgm")


def main():
    a = Asm()
    kernels = []
    emit_ln(a); kernels.append(("ln_kernel", 48, 512, 256, 0))
    emit_gemm1(a); kernels.append(("gemm1_kernel", A_END, 256, 512, 4 * STG))
    emit_attn(a); kernels.append(("attn_kernel", 256, 512, 256, 24576))
    emit_gemm2(a); kernels.append(("gemm2_kernel", B_END, 256, 512, 3 * STG2))
    emit_combine(a); kernels.append(("comb_kernel", 80, 512, 256, 0))
    hdr = "; generated by gen4.py (own generator)\n"
    for n, v, g, b, lds in kernels:
        hdr += f"; @launch kernel={n} grid=({g},1,1) block=({b},1,1) lds={lds}\n"
    out = hdr + '.amdgcn_target "amdgcn-amd-amdhsa--gfx950"\n.text\n' + a.text()
    out += '.section .rodata,"a"\n'
    for n, v, g, b, lds in kernels:
        out += ".p2align 6\n" + kernel_desc(n, v)
    open(os.environ.get("OUT", f"cdna_kernels/{NAME}.s"), "w").write(out)


main()
```

```python
import sys, os
NAME = "parallel_sum__sliding_block__glu_gated_reglu__prompt"
WS_XN = 0
WS_QKV = 4 << 20
WS_OH = 16 << 20
WS_P = 64 << 20
EXP = os.environ.get("EXP", "")


class Asm:
    def __init__(self):
        self.lines = []
        self.nlab = 0

    def __call__(self, s):
        for l in s.strip("\n").split("\n"):
            self.lines.append("    " + l.strip())

    def label(self, l):
        self.lines.append(l + ":")

    def newlabel(self, p="L"):
        self.nlab += 1
        return f"{p}_{self.nlab}"

    def text(self):
        return "\n".join(self.lines) + "\n"


def kernel_begin(a, name):
    a.lines.append(f".globl {name}")
    a.lines.append(".p2align 8")
    a.lines.append(f".type {name},@function")
    a.label(name)


def kernel_desc(name, vgpr, sgpr=102):
    acc = (vgpr + 3) // 4 * 4
    acc = max(4, min(256, acc))
    return f""".amdhsa_kernel {name}
  .amdhsa_next_free_vgpr {vgpr}
  .amdhsa_next_free_sgpr {sgpr}
  .amdhsa_accum_offset {acc}
  .amdhsa_group_segment_fixed_size 0
  .amdhsa_kernarg_size 80
  .amdhsa_user_sgpr_count 2
  .amdhsa_user_sgpr_kernarg_segment_ptr 1
  .amdhsa_system_sgpr_workgroup_id_x 1
.end_amdhsa_kernel
"""


def srd(a, s, lo, hi, size):
    a(f"s_mov_b32 s{s}, s{lo}")
    a(f"s_mov_b32 s{s+1}, s{hi}")
    a(f"s_mov_b32 s{s+2}, {size}")
    a(f"s_mov_b32 s{s+3}, 0x00020000")


def bf16r(a, v):
    a(f"v_cvt_pk_bf16_f32 v{v}, v{v}, v{v}")
    a(f"v_lshlrev_b32 v{v}, 16, v{v}")


def emit_ln(a):
    kernel_begin(a, "ln_kernel")
    a("s_cmp_ge_u32 s2, 512")
    a("s_cbranch_scc1 L_ln_done")
    a("s_load_dwordx2 s[4:5], s[0:1], 0")
    a("s_load_dwordx2 s[6:7], s[0:1], 72")
    a("v_lshrrev_b32 v1, 6, v0")
    a("v_and_b32 v2, 63, v0")
    a("s_lshl_b32 s3, s2, 2")
    a("v_add_u32 v40, s3, v1")
    a("v_lshlrev_b32 v1, 11, v40")
    a("v_lshl_add_u32 v1, v2, 5, v1")
    a("v_xor_b32 v3, 32, v2")
    a("v_lshlrev_b32 v3, 2, v3")
    a("v_lshrrev_b32 v41, 8, v40")
    a("v_lshlrev_b32 v41, 5, v41")
    a("v_lshrrev_b32 v42, 1, v2")
    a("v_add_u32 v41, v41, v42")
    a("v_lshlrev_b32 v41, 8, v41")
    a("v_and_b32 v42, 255, v40")
    a("v_add_u32 v41, v41, v42")
    a("v_lshlrev_b32 v41, 6, v41")
    a("v_bfe_u32 v42, v40, 2, 2")
    a("v_and_b32 v43, 1, v2")
    a("v_lshlrev_b32 v43, 1, v43")
    a("v_xor_b32 v44, v43, v42")
    a("v_lshl_add_u32 v44, v44, 4, v41")
    a("v_or_b32 v43, 1, v43")
    a("v_xor_b32 v45, v43, v42")
    a("v_lshl_add_u32 v45, v45, 4, v41")
    a("s_waitcnt lgkmcnt(0)")
    srd(a, 8, 4, 5, 4194304)
    srd(a, 12, 6, 7, 4194304)
    a("buffer_load_dwordx4 v[4:7], v1, s[8:11], 0 offen")
    a("buffer_load_dwordx4 v[8:11], v1, s[8:11], 0 offen offset:16")
    a("s_waitcnt vmcnt(0)")
    for i in range(8):
        a(f"v_lshlrev_b32 v{16+2*i}, 16, v{4+i}")
        a(f"v_and_b32 v{17+2*i}, 0xffff0000, v{4+i}")
    a("v_add_f32 v32, v16, v17")
    for i in range(2, 16):
        a(f"v_add_f32 v32, v32, v{16+i}")

    def reduce(v):
        for pat in ("quad_perm:[1,0,3,2]", "quad_perm:[2,3,0,1]", "row_half_mirror", "row_mirror"):
            a("s_nop 1")
            a(f"v_add_f32_dpp v{v}, v{v}, v{v} {pat} row_mask:0xf bank_mask:0xf")
        a("s_nop 1")
        for i in range(4):
            a(f"v_readlane_b32 s{40+i}, v{v}, {16*i}")
        a("s_nop 1")
        a(f"v_mov_b32 v{v}, s40")
        for i in range(1, 4):
            a(f"v_add_f32 v{v}, s{40+i}, v{v}")

    reduce(32)
    a("v_mul_f32 v32, 0x3a800000, v32")
    a("v_sub_f32 v35, v16, v32")
    a("v_mul_f32 v34, v35, v35")
    for i in range(1, 16):
        a(f"v_sub_f32 v35, v{16+i}, v32")
        a(f"v_fmac_f32 v34, v35, v35")
    reduce(34)
    a("v_mul_f32 v34, 0x3a800000, v34")
    bf16r(a, 32)
    bf16r(a, 34)
    a("v_add_f32 v34, 0x3727c5ac, v34")
    bf16r(a, 34)
    a("v_sqrt_f32 v34, v34")
    a("s_nop 0")
    bf16r(a, 34)
    a("v_rcp_f32 v34, v34")
    a("s_nop 0")
    for i in range(16):
        a(f"v_sub_f32 v{16+i}, v{16+i}, v32")
    for i in range(16):
        bf16r(a, 16 + i)
    for i in range(16):
        a(f"v_mul_f32 v{16+i}, v{16+i}, v34")
    for i in range(8):
        a(f"v_cvt_pk_bf16_f32 v{4+i}, v{16+2*i}, v{17+2*i}")
    a("buffer_store_dwordx4 v[4:7], v44, s[12:15], 0 offen")
    a("buffer_store_dwordx4 v[8:11], v45, s[12:15], 0 offen")
    a.label("L_ln_done")
    a("s_endpgm")


A_XOFF = 4
A_WOFF = 5
A_XRD = 10
A_WRD = 18
A_TMP = 30
A_FR = 36
A_ACC = 92
A_END = 252
STG = 36864


def emit_gemm1(a):
    name = "gemm1_kernel"
    kernel_begin(a, name)
    L = lambda s: f"L_g1_{s}"
    t = A_TMP
    a("s_cmp_ge_u32 s2, 256")
    a(f"s_cbranch_scc1 {L('done')}")
    a("s_load_dwordx2 s[4:5], s[0:1], 8")
    a("s_load_dwordx2 s[6:7], s[0:1], 32")
    a("s_load_dwordx2 s[24:25], s[0:1], 40")
    a("s_load_dwordx2 s[26:27], s[0:1], 72")
    a("v_lshrrev_b32 v1, 6, v0")
    a("v_and_b32 v2, 63, v0")
    a("s_nop 0")
    a("v_readfirstlane_b32 s20, v1")
    a("s_and_b32 s3, s2, 7")
    a("s_lshr_b32 s18, s2, 3")
    a("s_and_b32 s30, s18, 7")
    a("s_lshr_b32 s18, s18, 3")
    a("s_lshl_b32 s31, s3, 2")
    a("s_add_u32 s31, s31, s18")
    a("s_lshr_b32 s21, s20, 2")
    a("s_waitcnt lgkmcnt(0)")
    a("s_mov_b32 s8, s26")
    a("s_mov_b32 s9, s27")
    a("s_mov_b32 s10, 4194304")
    a("s_mov_b32 s11, 0x00020000")
    a("s_lshl_b32 s16, s30, 19")
    a("s_cmp_lt_u32 s31, 28")
    a(f"s_cbranch_scc0 {L('typeB')}")
    a("s_lshl_b32 s18, s31, 8")
    for s, (lo, hi, extra) in enumerate([(6, 7, 0), (24, 25, 0), (6, 7, 128), (24, 25, 128)]):
        b = 64 + 4 * s
        a(f"s_add_u32 s19, s18, {extra}")
        a(f"s_add_u32 s{b}, s{lo}, s19")
        a(f"s_addc_u32 s{b+1}, s{hi}, 0")
        a(f"s_sub_u32 s{b+2}, 7340032, s19")
        a(f"s_movk_i32 s{84+s}, 7168")
    a("s_lshl_b32 s19, s31, 7")
    a("s_add_u32 s80, s4, s19")
    a("s_addc_u32 s81, s5, 0")
    a("s_sub_u32 s82, 6291456, s19")
    a("s_movk_i32 s88, 6144")
    a(f"s_branch {L('wdone')}")
    a.label(L("typeB"))
    a("s_sub_u32 s18, s31, 28")
    a("s_mul_i32 s18, s18, 640")
    a("s_add_u32 s18, s18, 3584")
    for s in range(5):
        b = 64 + 4 * s
        a(f"s_add_u32 s19, s18, {128*s}")
        a(f"s_add_u32 s{b}, s4, s19")
        a(f"s_addc_u32 s{b+1}, s5, 0")
        a(f"s_sub_u32 s{b+2}, 6291456, s19")
        a(f"s_movk_i32 s{84+s}, 6144")
    a.label(L("wdone"))
    for s in range(5):
        a(f"s_mov_b32 s{67+4*s}, 0x00020000")
        a(f"s_mov_b32 s{90+s}, 0")
        a(f"s_lshl_b32 s{95+s}, s{84+s}, 5")
    a("s_lshl_b32 s35, s20, 11")
    a(f"v_lshl_add_u32 v{A_XOFF}, v2, 4, s35")
    a(f"v_lshrrev_b32 v{t}, 3, v2")
    a(f"v_and_b32 v{t+1}, 7, v2")
    a(f"v_lshrrev_b32 v{t+2}, 4, v2")
    a("s_and_b32 s35, s20, 3")
    a("s_lshl_b32 s23, s35, 10")
    a("s_lshl_b32 s35, s35, 3")
    a(f"v_add_u32 v{t+3}, s35, v{t}")
    a(f"v_and_b32 v{t+4}, 1, v{t+2}")
    a(f"v_lshlrev_b32 v{t+4}, 2, v{t+4}")
    a(f"v_xor_b32 v{t+4}, v{t+4}, v{t+1}")
    a(f"v_lshlrev_b32 v{t+4}, 4, v{t+4}")
    for s in range(5):
        a(f"v_mul_lo_u32 v{t+5}, v{t+3}, s{84+s}")
        a(f"v_add_u32 v{A_WOFF+s}, v{t+5}, v{t+4}")
    a(f"v_and_b32 v{t}, 31, v2")
    a(f"v_lshrrev_b32 v{t+1}, 5, v2")
    a("s_lshr_b32 s35, s20, 1")
    a("s_lshl_b32 s35, s35, 6")
    a(f"v_add_u32 v{t+2}, s35, v{t}")
    a(f"v_lshlrev_b32 v{t+2}, 6, v{t+2}")
    a(f"v_bfe_u32 v{t+3}, v{t}, 2, 2")
    for ks in range(2):
        a(f"v_or_b32 v{t+4}, {ks*2}, v{t+1}")
        a(f"v_xor_b32 v{t+4}, v{t+4}, v{t+3}")
        a(f"v_lshl_add_u32 v{A_XRD+ks}, v{t+4}, 4, v{t+2}")
        for sl in range(1, 4):
            a(f"v_add_u32 v{A_XRD+2*sl+ks}, {sl*STG}, v{A_XRD+ks}")
    a(f"v_bfe_u32 v{t}, v2, 2, 2")
    a(f"v_lshrrev_b32 v{t+1}, 5, v2")
    a(f"v_lshl_add_u32 v{t+1}, v{t+1}, 3, v{t}")
    a(f"v_lshlrev_b32 v{t+1}, 7, v{t+1}")
    a(f"v_and_b32 v{t+3}, 1, v2")
    a(f"v_lshl_add_u32 v{t+1}, v{t+3}, 3, v{t+1}")
    a(f"v_add_u32 v{t+1}, 16384, v{t+1}")
    a(f"v_bfe_u32 v{t+2}, v2, 4, 1")
    a(f"v_bfe_u32 v{t+3}, v2, 1, 1")
    a(f"v_lshl_add_u32 v{t+2}, v{t+2}, 1, v{t+3}")
    a(f"v_bfe_u32 v{t+3}, v2, 3, 1")
    a(f"v_lshlrev_b32 v{t+3}, 2, v{t+3}")
    a("s_and_b32 s35, s20, 1")
    a("s_lshl_b32 s36, s35, 13")
    a("s_lshl_b32 s35, s35, 2")
    for j in range(2):
        a(f"v_or_b32 v{t+4}, {4*j}, v{t+2}")
        a(f"v_xor_b32 v{t+4}, v{t+4}, v{t+3}")
        a(f"v_lshl_add_u32 v{A_WRD+j}, v{t+4}, 4, v{t+1}")
        a(f"v_add_u32 v{A_WRD+j}, s36, v{A_WRD+j}")
    a(f"v_or_b32 v{t+4}, s35, v{t+2}")
    a(f"v_xor_b32 v{t+4}, v{t+4}, v{t+3}")
    a(f"v_lshl_add_u32 v{A_WRD+2}, v{t+4}, 4, v{t+1}")
    a(f"v_add_u32 v{A_WRD+2}, {4*4096}, v{A_WRD+2}")
    for sl in range(1, 4):
        for j in range(3):
            a(f"v_add_u32 v{A_WRD+3*sl+j}, {sl*STG}, v{A_WRD+j}")
    for i in range(160):
        a(f"v_mov_b32 v{A_ACC+i}, 0")
    a("s_lshl_b32 s22, s20, 11")

    def dma_stage(sl, par, part):
        if part == 0:
            a(f"s_add_u32 m0, s22, {sl*STG}")
            a("s_nop 0")
            a(f"buffer_load_dwordx4 v{A_XOFF}, s[8:11], s16 offen lds")
            a(f"buffer_load_dwordx4 v{A_XOFF}, s[8:11], s16 offen offset:1024 lds")
        else:
            lab = a.newlabel("L_g1_d"); lab2 = a.newlabel("L_g1_e")
            a(f"s_cmp_eq_u32 s21, {par}")
            a(f"s_cbranch_scc0 {lab}")
            for s in range(3):
                a(f"s_add_u32 m0, s23, {sl*STG + 16384 + s*4096}")
                a("s_nop 0")
                a(f"buffer_load_dwordx4 v{A_WOFF+s}, s[{64+4*s}:{67+4*s}], s{90+s} offen lds")
            a(f"s_branch {lab2}")
            a.label(lab)
            for s in range(3, 5):
                a(f"s_add_u32 m0, s23, {sl*STG + 16384 + s*4096}")
                a("s_nop 0")
                a(f"buffer_load_dwordx4 v{A_WOFF+s}, s[{64+4*s}:{67+4*s}], s{90+s} offen lds")
            a.label(lab2)

    def adv():
        a("s_add_u32 s16, s16, 16384")
        for s in range(5):
            a(f"s_add_u32 s{90+s}, s{90+s}, s{95+s}")

    def reads(sl, ks, fs):
        fb = A_FR + fs * 28
        for q in range(5):
            wf = fb + q * 4
            if q < 4:
                ad = A_WRD + 3 * sl + (q & 1); base = (q >> 1) * 4096
            else:
                ad = A_WRD + 3 * sl + 2; base = 0
            for hh in range(2):
                a(f"ds_read_b64_tr_b16 v[{wf+2*hh}:{wf+2*hh+1}], v{ad} offset:{base + (ks*16 + hh*4)*128}")
        for mt in range(2):
            xf = fb + 20 + mt * 4
            a(f"ds_read_b128 v[{xf}:{xf+3}], v{A_XRD + 2*sl + ks} offset:{mt*2048}")

    def mfmas(fs, lo, hi):
        fb = A_FR + fs * 28
        k = 0
        for mt in range(2):
            for q in range(5):
                if lo <= k < hi:
                    d = A_ACC + (q * 2 + mt) * 16
                    a(f"v_mfma_f32_32x32x16_bf16 v[{d}:{d+15}], v[{fb+q*4}:{fb+q*4+3}], v[{fb+20+mt*4}:{fb+20+mt*4+3}], v[{d}:{d+15}]")
                k += 1

    def read_list(sl, ks, fs):
        fb = A_FR + fs * 28
        out = []
        for mt in range(2):
            xf = fb + 20 + mt * 4
            out.append(f"ds_read_b128 v[{xf}:{xf+3}], v{A_XRD + 2*sl + ks} offset:{mt*2048}")
        for q in range(5):
            wf = fb + q * 4
            if q < 4:
                ad = A_WRD + 3 * sl + (q & 1); base = (q >> 1) * 4096
            else:
                ad = A_WRD + 3 * sl + 2; base = 0
            for hh in range(2):
                out.append(f"ds_read_b64_tr_b16 v[{wf+2*hh}:{wf+2*hh+1}], v{ad} offset:{base + (ks*16 + hh*4)*128}")
        return out

    def mfma_list(fs):
        fb = A_FR + fs * 28
        out = []
        for mt in range(2):
            for q in range(5):
                d = A_ACC + (q * 2 + mt) * 16
                out.append(f"v_mfma_f32_32x32x16_bf16 v[{d}:{d+15}], v[{fb+q*4}:{fb+q*4+3}], v[{fb+20+mt*4}:{fb+20+mt*4+3}], v[{d}:{d+15}]")
        return out

    def substep(fs, rl, dma_fn):
        ml = mfma_list(fs)
        if "ilv" in EXP:
            ri = 0
            for i, m in enumerate(ml):
                a(m)
                if rl:
                    for _ in range(2):
                        if ri < len(rl):
                            a(rl[ri]); ri += 1
                if dma_fn and i == 6:
                    dma_fn()
        else:
            for m in ml[:5]:
                a(m)
            if dma_fn:
                dma_fn()
            for m in ml[5:]:
                a(m)

    def step(sl, do_dma, last):
        rl1 = read_list(sl, 1, 1)
        rl0 = read_list((sl + 1) % 4, 0, 0) if not last else []
        def dmaf():
            dma_stage((sl + 3) % 4, (sl + 3) % 2, 0)
            dma_stage((sl + 3) % 4, (sl + 3) % 2, 1)
            adv()
        if "ilv" in EXP:
            a("s_waitcnt lgkmcnt(0)")
            substep(0, rl1, dmaf if do_dma else None)
            a("s_waitcnt lgkmcnt(0)")
            substep(1, rl0, None)
        else:
            for r in rl1: a(r)
            a("s_waitcnt lgkmcnt(12)")
            substep(0, None, dmaf if do_dma else None)
            for r in rl0: a(r)
            a("s_waitcnt lgkmcnt(12)" if not last else "s_waitcnt lgkmcnt(0)")
            substep(1, None, None)

    for st in range(3):
        dma_stage(st, st % 2, 0)
        dma_stage(st, st % 2, 1)
        adv()
    a("s_waitcnt vmcnt(4)")
    a("s_barrier")
    reads(0, 0, 0)
    a("s_movk_i32 s37, 7")
    a.label(L("loop"))
    for sl in range(4):
        step(sl, True, False)
        a("s_waitcnt vmcnt(4)")
        a("s_barrier")
    a("s_sub_u32 s37, s37, 1")
    a("s_cmp_lg_u32 s37, 0")
    a(f"s_cbranch_scc1 {L('loop')}")
    step(0, True, False)
    a("s_waitcnt vmcnt(4)")
    a("s_barrier")
    step(1, False, False)
    a("s_waitcnt vmcnt(0)")
    a("s_barrier")
    step(2, False, False)
    a("s_barrier")
    step(3, False, True)
    a("s_nop 15")
    a("s_nop 7")
    a("s_barrier")
    a(f"v_and_b32 v{t}, 31, v2")
    a(f"v_lshrrev_b32 v{t+1}, 5, v2")
    a(f"v_lshlrev_b32 v4, 6, v{t}")
    a(f"v_lshl_add_u32 v4, v{t+1}, 3, v4")
    a("s_lshl_b32 s35, s20, 13")
    a(f"v_add_u32 v4, s35, v4")
    a(f"v_bfe_u32 v{t+2}, v{t}, 2, 2")
    for g in range(4):
        a(f"v_xor_b32 v{t+3}, {g}, v{t+2}")
        a(f"v_lshl_add_u32 v{5+g}, v{t+3}, 4, v4")
    a(f"v_lshlrev_b32 v9, 4, v2")
    a(f"v_add_u32 v10, s35, v9")
    a(f"s_add_u32 s8, s26, {WS_QKV}")
    a("s_addc_u32 s9, s27, 0")
    a(f"s_mov_b32 s10, {96*2048*64}")
    a(f"s_add_u32 s12, s26, {WS_OH}")
    a("s_addc_u32 s13, s27, 0")
    a(f"s_mov_b32 s14, {8*144*256*64}")
    a("s_mov_b32 s15, 0x00020000")
    a("s_lshr_b32 s35, s20, 1")
    a("s_lshl_b32 s39, s35, 12")
    cnt = [0]

    def flush(buf, sr, sreg):
        tb = A_FR + (cnt[0] % 2) * 16
        cnt[0] += 1
        a("s_waitcnt lgkmcnt(0)")
        for i in range(4):
            a(f"ds_read_b128 v[{tb+4*i}:{tb+4*i+3}], v10 offset:{buf*4096 + i*1024}")
        a("s_waitcnt lgkmcnt(0)")
        for i in range(4):
            a(f"buffer_store_dwordx4 v[{tb+4*i}:{tb+4*i+3}], v9, s[{sr}:{sr+3}], s{sreg} offen offset:{i*1024}")

    def q_store(q, sreg, buf):
        for mt in range(2):
            for g in range(4):
                r = A_ACC + (q * 2 + mt) * 16 + 4 * g
                a(f"v_cvt_pk_bf16_f32 v{t+2}, v{r}, v{r+1}")
                a(f"v_cvt_pk_bf16_f32 v{t+3}, v{r+2}, v{r+3}")
                a(f"ds_write_b64 v4, v[{t+2}:{t+3}] offset:{buf*4096 + mt*2048 + g*16}")
        flush(buf, 8, sreg)

    def gu_store(qg, qu, sreg, buf):
        for mt in range(2):
            for g in range(4):
                rg = A_ACC + (qg * 2 + mt) * 16 + 4 * g
                ru = A_ACC + (qu * 2 + mt) * 16 + 4 * g
                a(f"v_cvt_pk_bf16_f32 v{t+2}, v{rg}, v{rg+1}")
                a(f"v_cvt_pk_bf16_f32 v{t+3}, v{rg+2}, v{rg+3}")
                a(f"v_cvt_pk_bf16_f32 v{t+4}, v{ru}, v{ru+1}")
                a(f"v_cvt_pk_bf16_f32 v{t+5}, v{ru+2}, v{ru+3}")
                a(f"v_lshlrev_b32 v{rg}, 16, v{t+2}")
                a(f"v_and_b32 v{rg+1}, 0xffff0000, v{t+2}")
                a(f"v_lshlrev_b32 v{rg+2}, 16, v{t+3}")
                a(f"v_and_b32 v{rg+3}, 0xffff0000, v{t+3}")
                a(f"v_lshlrev_b32 v{ru}, 16, v{t+4}")
                a(f"v_and_b32 v{ru+1}, 0xffff0000, v{t+4}")
                a(f"v_lshlrev_b32 v{ru+2}, 16, v{t+5}")
                a(f"v_and_b32 v{ru+3}, 0xffff0000, v{t+5}")
                for i in range(4):
                    a(f"v_max_f32 v{rg+i}, 0, v{rg+i}")
                for i in range(4):
                    a(f"v_mul_f32 v{rg+i}, v{rg+i}, v{ru+i}")
                a(f"v_cvt_pk_bf16_f32 v{t+2}, v{rg}, v{rg+1}")
                a(f"v_cvt_pk_bf16_f32 v{t+3}, v{rg+2}, v{rg+3}")
                a(f"ds_write_b64 v{5+g}, v[{t+2}:{t+3}] offset:{buf*4096 + mt*2048}")
        flush(buf, 12, sreg)

    a("s_and_b32 s38, s20, 1")
    a("s_cmp_lt_u32 s31, 28")
    a(f"s_cbranch_scc0 {L('epiB')}")
    a("s_mul_i32 s35, s30, 144")
    a("s_lshl_b32 s36, s31, 2")
    a("s_add_u32 s35, s35, s36")
    a("s_lshl_b32 s36, s38, 1")
    a("s_add_u32 s35, s35, s36")
    a("s_add_u32 s35, s35, 32")
    a("s_lshl_b32 s35, s35, 14")
    a("s_add_u32 s35, s35, s39")
    gu_store(0, 2, 35, 0)
    a("s_add_u32 s36, s35, 16384")
    gu_store(1, 3, 36, 1)
    a("s_lshl_b32 s35, s31, 1")
    a("s_add_u32 s35, s35, s38")
    a("s_lshl_b32 s35, s35, 17")
    a("s_lshl_b32 s36, s30, 14")
    a("s_add_u32 s35, s35, s36")
    a("s_add_u32 s35, s35, s39")
    q_store(4, 35, 0)
    a(f"s_branch {L('done')}")
    a.label(L("epiB"))
    a("s_sub_u32 s18, s31, 28")
    a("s_mul_i32 s18, s18, 10")
    a("s_add_u32 s18, s18, 56")
    a("s_lshl_b32 s19, s30, 14")
    a("s_add_u32 s19, s19, s39")
    for q in range(4):
        a("s_lshl_b32 s36, s38, 2")
        a("s_add_u32 s35, s18, s36")
        a(f"s_add_u32 s35, s35, {q}")
        a("s_lshl_b32 s35, s35, 17")
        a("s_add_u32 s35, s35, s19")
        q_store(q, 35, q % 2)
    a("s_add_u32 s35, s18, s38")
    a("s_add_u32 s35, s35, 8")
    a("s_lshl_b32 s35, s35, 17")
    a("s_add_u32 s35, s35, s19")
    q_store(4, 35, 0)
    a.label(L("done"))
    a("s_endpgm")


def emit_attn(a):
    kernel_begin(a, "attn_kernel")
    L = lambda s: f"L_attn_{s}"
    VQ = 8; VK = 16; VS = 88; VO = 232; VP = 16; VT = 248
    a("s_cmp_ge_u32 s2, 512")
    a(f"s_cbranch_scc1 {L('done')}")
    a("s_load_dwordx2 s[26:27], s[0:1], 72")
    a("v_lshrrev_b32 v1, 6, v0")
    a("v_and_b32 v2, 63, v0")
    a("s_nop 0")
    a("v_readfirstlane_b32 s20, v1")
    a("s_and_b32 s30, s2, 31")
    a("s_lshr_b32 s31, s2, 5")
    a("s_waitcnt lgkmcnt(0)")
    a(f"s_add_u32 s8, s26, {WS_QKV}")
    a("s_addc_u32 s9, s27, 0")
    a(f"s_mov_b32 s10, {96*131072}")
    a("s_mov_b32 s11, 0x00020000")
    a("v_and_b32 v3, 31, v2")
    a("v_lshrrev_b32 v4, 5, v2")
    a("v_xor_b32 v5, 32, v2")
    a("v_lshlrev_b32 v5, 2, v5")
    a("s_lshl_b32 s32, s31, 7")
    a("s_lshl_b32 s33, s20, 5")
    a("s_add_u32 s32, s32, s33")
    a("s_lshl_b32 s34, s30, 17")
    a("s_lshl_b32 s35, s31, 13")
    a("s_add_u32 s35, s35, s34")
    a(f"s_add_u32 s35, s35, {64*131072 - 256*64}")
    a("s_mul_i32 s38, s20, 6144")
    a("s_add_u32 s35, s35, s38")
    a(f"v_lshl_add_u32 v{VT}, v2, 4, s35")
    for j in range(6):
        a(f"s_add_u32 m0, s38, {j*1024}")
        if j:
            a(f"v_add_u32 v{VT}, 1024, v{VT}")
        else:
            a("s_nop 0")
        a(f"buffer_load_dwordx4 v{VT}, s[8:11], 0 offen lds")
    a("v_add_u32 v6, s32, v3")
    a("v_lshlrev_b32 v6, 6, v6")
    a("v_lshl_add_u32 v6, v4, 4, v6")
    a("v_add_u32 v6, s34, v6")
    a(f"buffer_load_dwordx4 v[{VQ}:{VQ+3}], v6, s[8:11], 0 offen")
    a(f"buffer_load_dwordx4 v[{VQ+4}:{VQ+7}], v6, s[8:11], 0 offen offset:32")
    a(f"v_add_u32 v7, {32*131072 - 256*64}, v6")
    for b in range(9):
        a(f"buffer_load_dwordx4 v[{VK+8*b}:{VK+8*b+3}], v7, s[8:11], 0 offen")
        a(f"buffer_load_dwordx4 v[{VK+8*b+4}:{VK+8*b+7}], v7, s[8:11], 0 offen offset:32")
        if b < 8:
            a(f"v_add_u32 v7, 2048, v7")
    for i in range(144):
        a(f"v_mov_b32 v{VS+i}, 0")
    for i in range(16):
        a(f"v_mov_b32 v{VO+i}, 0")
    a(f"v_lshlrev_b32 v{VT}, 2, v4")
    a(f"v_sub_u32 v{VT}, v3, v{VT}")
    for r in range(16):
        c = 8 * (r // 4) + (r % 4)
        a(f"v_cmp_gt_i32 s[{40+2*r}:{41+2*r}], {c}, v{VT}")
    a("s_waitcnt vmcnt(0)")
    for b in range(9):
        d = VS + 16 * b
        a(f"v_mfma_f32_32x32x16_bf16 v[{d}:{d+15}], v[{VK+8*b}:{VK+8*b+3}], v[{VQ}:{VQ+3}], v[{d}:{d+15}]")
    for b in range(9):
        d = VS + 16 * b
        a(f"v_mfma_f32_32x32x16_bf16 v[{d}:{d+15}], v[{VK+8*b+4}:{VK+8*b+7}], v[{VQ+4}:{VQ+7}], v[{d}:{d+15}]")
    a("s_nop 15")
    a("s_nop 7")
    a("v_mov_b32 v6, 0x3e3504f3")
    a("v_mov_b32 v7, 0x3e3504f3")
    for i in range(0, 144, 2):
        r = VS + i
        a(f"v_cvt_pk_bf16_f32 v{VT}, v{r}, v{r+1}")
        a(f"v_lshlrev_b32 v{r}, 16, v{VT}")
        a(f"v_and_b32 v{r+1}, 0xffff0000, v{VT}")
        a(f"v_pk_mul_f32 v[{r}:{r+1}], v[{r}:{r+1}], v[6:7]")
        a(f"v_cvt_pk_bf16_f32 v{VT}, v{r}, v{r+1}")
        a(f"v_lshlrev_b32 v{r}, 16, v{VT}")
        a(f"v_and_b32 v{r+1}, 0xffff0000, v{VT}")
    a("s_mov_b32 s37, 0xce6e6b28")
    a(f"v_mov_b32 v{VT}, s37")
    for r in range(16):
        a(f"v_cndmask_b32 v{VS+r}, v{VT}, v{VS+r}, s[{40+2*r}:{41+2*r}]")
        a(f"v_cndmask_b32 v{VS+128+r}, v{VS+128+r}, v{VT}, s[{40+2*r}:{41+2*r}]")
    a("s_lshr_b32 s35, s32, 5")
    a("s_sub_i32 s35, 8, s35")
    for b in range(8):
        a(f"s_cmp_gt_i32 s35, {b}")
        a(f"s_cbranch_scc0 {L('nbdone')}")
        for r in range(16):
            a(f"v_mov_b32 v{VS+16*b+r}, v{VT}")
    a.label(L("nbdone"))
    a(f"v_max_f32 v{VT+1}, v{VS}, v{VS+1}")
    for i in range(2, 144, 2):
        a(f"v_max3_f32 v{VT+1}, v{VT+1}, v{VS+i}, v{VS+i+1}")
    a(f"ds_bpermute_b32 v{VT+2}, v5, v{VT+1}")
    a("s_waitcnt lgkmcnt(0)")
    a(f"v_max_f32 v{VT+1}, v{VT+1}, v{VT+2}")
    a("s_mov_b32 s37, 0x3fb8aa3b")
    a(f"v_mul_f32 v{VT+2}, s37, v{VT+1}")
    a(f"v_sub_f32 v{VT+2}, 0, v{VT+2}")
    a(f"v_mov_b32 v{VT+3}, v{VT+2}")
    a("v_mov_b32 v6, s37")
    a("v_mov_b32 v7, s37")
    for i in range(0, 144, 2):
        a(f"v_pk_fma_f32 v[{VS+i}:{VS+i+1}], v[{VS+i}:{VS+i+1}], v[6:7], v[{VT+2}:{VT+3}]")
    for i in range(144):
        a(f"v_exp_f32 v{VS+i}, v{VS+i}")
    a("s_nop 0")
    a(f"v_pk_add_f32 v[{VT+2}:{VT+3}], v[{VS}:{VS+1}], v[{VS+2}:{VS+3}]")
    for i in range(4, 144, 2):
        a(f"v_pk_add_f32 v[{VT+2}:{VT+3}], v[{VT+2}:{VT+3}], v[{VS+i}:{VS+i+1}]")
    a(f"v_add_f32 v{VT+2}, v{VT+2}, v{VT+3}")
    a(f"ds_bpermute_b32 v{VT+3}, v5, v{VT+2}")
    a("s_waitcnt lgkmcnt(0)")
    a(f"v_add_f32 v{VT+2}, v{VT+2}, v{VT+3}")
    a(f"v_rcp_f32 v{VT+2}, v{VT+2}")
    a("s_nop 0")
    a(f"v_mov_b32 v{VT+3}, v{VT+2}")
    for i in range(0, 144, 2):
        a(f"v_pk_mul_f32 v[{VS+i}:{VS+i+1}], v[{VS+i}:{VS+i+1}], v[{VT+2}:{VT+3}]")
        a(f"v_cvt_pk_bf16_f32 v{VP+i//2}, v{VS+i}, v{VS+i+1}")
    a(f"v_bfe_u32 v{VT}, v2, 2, 2")
    a(f"v_lshl_add_u32 v{VT}, v4, 2, v{VT}")
    a("s_lshl_b32 s35, s20, 5")
    a(f"v_add_u32 v{VT}, s35, v{VT}")
    a(f"v_lshlrev_b32 v{VT}, 6, v{VT}")
    a(f"v_bfe_u32 v{VT+1}, v2, 4, 1")
    a(f"v_lshl_add_u32 v{VT}, v{VT+1}, 5, v{VT}")
    a(f"v_and_b32 v{VT+1}, 3, v2")
    a(f"v_lshl_add_u32 v6, v{VT+1}, 3, v{VT}")
    a("s_barrier")
    steps = [(b, t) for b in range(9) for t in range(2)]

    def rdv(idx):
        b, t = steps[idx]
        f = VT + (idx % 2) * 4
        off = (32 * b + 16 * t) * 64
        a(f"ds_read_b64_tr_b16 v[{f}:{f+1}], v6 offset:{off}")
        a(f"ds_read_b64_tr_b16 v[{f+2}:{f+3}], v6 offset:{off + 512}")

    rdv(0)
    for idx, (b, t) in enumerate(steps):
        if idx + 1 < len(steps):
            rdv(idx + 1)
            a("s_waitcnt lgkmcnt(2)")
        else:
            a("s_waitcnt lgkmcnt(0)")
        f = VT + (idx % 2) * 4
        p = VP + 8 * b + 4 * t
        a(f"v_mfma_f32_32x32x16_bf16 v[{VO}:{VO+15}], v[{f}:{f+3}], v[{p}:{p+3}], v[{VO}:{VO+15}]")
    a("s_nop 15")
    a("s_nop 7")
    a(f"s_add_u32 s8, s26, {WS_OH}")
    a("s_addc_u32 s9, s27, 0")
    a(f"s_mov_b32 s10, {8*144*256*64}")
    a("s_lshr_b32 s35, s32, 8")
    a("s_mul_i32 s35, s35, 144")
    a("s_add_u32 s35, s35, s30")
    a("s_lshl_b32 s35, s35, 14")
    a("s_and_b32 s36, s32, 255")
    a("s_lshl_b32 s36, s36, 6")
    a("s_add_u32 s35, s35, s36")
    a("v_lshlrev_b32 v6, 6, v3")
    a("v_lshl_add_u32 v6, v4, 3, v6")
    a("v_add_u32 v6, s35, v6")
    a("v_bfe_u32 v7, v3, 2, 2")
    for g in range(4):
        r = VO + 4 * g
        a(f"v_xor_b32 v{VT+2}, {g}, v7")
        a(f"v_lshl_add_u32 v{VT+2}, v{VT+2}, 4, v6")
        a(f"v_cvt_pk_bf16_f32 v{VT}, v{r}, v{r+1}")
        a(f"v_cvt_pk_bf16_f32 v{VT+1}, v{r+2}, v{r+3}")
        a(f"buffer_store_dwordx2 v[{VT}:{VT+1}], v{VT+2}, s[8:11], 0 offen")
        a("s_nop 1")
    a.label(L("done"))
    a("s_endpgm")


B_XOFF = 4
B_WOFF = 5
B_XRD = 6
B_WRD = 12
B_TMP = 18
B_FR = 24
B_ACC = 56
B_END = 120
STG2 = 49152


def emit_gemm2(a):
    name = "gemm2_kernel"
    kernel_begin(a, name)
    L = lambda s: f"L_g2_{s}"
    t = B_TMP
    a("s_cmp_ge_u32 s2, 256")
    a(f"s_cbranch_scc1 {L('done')}")
    a("s_load_dwordx2 s[4:5], s[0:1], 16")
    a("s_load_dwordx2 s[6:7], s[0:1], 48")
    a("s_load_dwordx2 s[26:27], s[0:1], 72")
    a("v_lshrrev_b32 v1, 6, v0")
    a("v_and_b32 v2, 63, v0")
    a("s_nop 0")
    a("v_readfirstlane_b32 s20, v1")
    a("s_bfe_u32 s38, s2, 0x20001")
    a("s_and_b32 s30, s2, 1")
    a("s_lshl_b32 s30, s30, 2")
    a("s_bfe_u32 s31, s2, 0x20003")
    a("s_add_u32 s30, s30, s31")
    a("s_lshr_b32 s31, s2, 5")
    a("s_waitcnt lgkmcnt(0)")
    a(f"s_add_u32 s8, s26, {WS_OH}")
    a("s_addc_u32 s9, s27, 0")
    a(f"s_mov_b32 s10, {8*144*16384}")
    a("s_mov_b32 s11, 0x00020000")
    a("s_mul_i32 s16, s30, 144")
    a("s_mul_i32 s18, s38, 36")
    a("s_add_u32 s16, s16, s18")
    a("s_lshl_b32 s16, s16, 14")
    a("s_lshr_b32 s21, s20, 2")
    a("s_lshl_b32 s18, s31, 8")
    a("s_lshl_b32 s19, s21, 7")
    a("s_add_u32 s18, s18, s19")
    a("s_add_u32 s12, s4, s18")
    a("s_addc_u32 s13, s5, 0")
    a("s_sub_u32 s14, 2097152, s18")
    a("s_add_u32 s32, s6, s18")
    a("s_addc_u32 s33, s7, 0")
    a("s_sub_u32 s34, 7340032, s18")
    a("s_mov_b32 s15, 0x00020000")
    a("s_mov_b32 s17, 0")
    a("s_mov_b32 s39, 0")
    a("s_cmp_eq_u32 s38, 0")
    a(f"s_cbranch_scc1 {L('k0')}")
    a("s_mul_i32 s19, s38, 36")
    a("s_sub_u32 s19, s19, 32")
    a("s_lshl_b32 s19, s19, 16")
    a("s_add_u32 s12, s32, s19")
    a("s_addc_u32 s13, s33, 0")
    a("s_sub_u32 s14, s34, s19")
    a("s_movk_i32 s39, 1000")
    a.label(L("k0"))
    a("s_lshl_b32 s35, s20, 11")
    a(f"v_lshl_add_u32 v{B_XOFF}, v2, 4, s35")
    a(f"v_lshrrev_b32 v{t}, 3, v2")
    a(f"v_and_b32 v{t+1}, 7, v2")
    a(f"v_lshrrev_b32 v{t+2}, 4, v2")
    a("s_and_b32 s35, s20, 3")
    a("s_lshl_b32 s35, s35, 3")
    a(f"v_add_u32 v{t+3}, s35, v{t}")
    a(f"v_lshlrev_b32 v{t+3}, 11, v{t+3}")
    a(f"v_and_b32 v{t+4}, 1, v{t+2}")
    a(f"v_lshlrev_b32 v{t+4}, 2, v{t+4}")
    a(f"v_xor_b32 v{t+4}, v{t+4}, v{t+1}")
    a(f"v_lshl_add_u32 v{B_WOFF}, v{t+4}, 4, v{t+3}")
    a(f"v_and_b32 v{t}, 31, v2")
    a(f"v_lshrrev_b32 v{t+1}, 5, v2")
    a("s_lshr_b32 s35, s20, 1")
    a("s_lshl_b32 s35, s35, 6")
    a(f"v_add_u32 v{t+2}, s35, v{t}")
    a(f"v_lshlrev_b32 v{t+2}, 6, v{t+2}")
    a(f"v_bfe_u32 v{t+3}, v{t}, 2, 2")
    for ks in range(2):
        a(f"v_or_b32 v{t+4}, {ks*2}, v{t+1}")
        a(f"v_xor_b32 v{t+4}, v{t+4}, v{t+3}")
        a(f"v_lshl_add_u32 v{B_XRD+ks}, v{t+4}, 4, v{t+2}")
        for sl in range(1, 3):
            a(f"v_add_u32 v{B_XRD+2*sl+ks}, {sl*STG2}, v{B_XRD+ks}")
    a(f"v_bfe_u32 v{t}, v2, 2, 2")
    a(f"v_lshrrev_b32 v{t+1}, 5, v2")
    a(f"v_lshl_add_u32 v{t+1}, v{t+1}, 3, v{t}")
    a(f"v_lshlrev_b32 v{t+1}, 7, v{t+1}")
    a(f"v_and_b32 v{t+3}, 1, v2")
    a(f"v_lshl_add_u32 v{t+1}, v{t+3}, 3, v{t+1}")
    a(f"v_add_u32 v{t+1}, 32768, v{t+1}")
    a(f"v_bfe_u32 v{t+2}, v2, 4, 1")
    a(f"v_bfe_u32 v{t+3}, v2, 1, 1")
    a(f"v_lshl_add_u32 v{t+2}, v{t+2}, 1, v{t+3}")
    a(f"v_bfe_u32 v{t+3}, v2, 3, 1")
    a(f"v_lshlrev_b32 v{t+3}, 2, v{t+3}")
    a("s_and_b32 s35, s20, 1")
    a("s_lshl_b32 s36, s35, 12")
    for j in range(2):
        a(f"v_or_b32 v{t+4}, {4*j}, v{t+2}")
        a(f"v_xor_b32 v{t+4}, v{t+4}, v{t+3}")
        a(f"v_lshl_add_u32 v{B_WRD+j}, v{t+4}, 4, v{t+1}")
        a(f"v_add_u32 v{B_WRD+j}, s36, v{B_WRD+j}")
        for sl in range(1, 3):
            a(f"v_add_u32 v{B_WRD+2*sl+j}, {sl*STG2}, v{B_WRD+j}")
    for i in range(64):
        a(f"v_mov_b32 v{B_ACC+i}, 0")
    a("s_lshl_b32 s22, s20, 11")
    a("s_and_b32 s35, s20, 3")
    a("s_lshl_b32 s23, s35, 10")
    a("s_lshl_b32 s35, s21, 12")
    a("s_add_u32 s23, s23, s35")

    def dma_kblk(sl, kb):
        a(f"s_add_u32 m0, s22, {sl*STG2 + kb*16384}")
        a("s_nop 0")
        a(f"buffer_load_dwordx4 v{B_XOFF}, s[8:11], s16 offen lds")
        a(f"buffer_load_dwordx4 v{B_XOFF}, s[8:11], s16 offen offset:1024 lds")
        a(f"s_add_u32 m0, s23, {sl*STG2 + 32768 + kb*8192}")
        a("s_add_u32 s16, s16, 16384")
        a(f"buffer_load_dwordx4 v{B_WOFF}, s[12:15], s17 offen lds")
        a("s_add_u32 s17, s17, 65536")
        a("s_add_u32 s39, s39, 1")
        a("s_cmp_eq_u32 s39, 32")
        a("s_cselect_b32 s12, s32, s12")
        a("s_cselect_b32 s13, s33, s13")
        a("s_cselect_b32 s14, s34, s14")
        a("s_cselect_b32 s17, 0, s17")

    def reads(sl, ss, fs):
        kb, ks = ss >> 1, ss & 1
        fb = B_FR + fs * 16
        for q in range(2):
            for hh in range(2):
                a(f"ds_read_b64_tr_b16 v[{fb+q*4+2*hh}:{fb+q*4+2*hh+1}], v{B_WRD+2*sl+q} offset:{kb*8192 + (ks*16 + hh*4)*128}")
        for mt in range(2):
            a(f"ds_read_b128 v[{fb+8+mt*4}:{fb+8+mt*4+3}], v{B_XRD+2*sl+ks} offset:{kb*16384 + mt*2048}")

    def mfmas(fs):
        fb = B_FR + fs * 16
        for q in range(2):
            for mt in range(2):
                d = B_ACC + (q * 2 + mt) * 16
                a(f"v_mfma_f32_32x32x16_bf16 v[{d}:{d+15}], v[{fb+q*4}:{fb+q*4+3}], v[{fb+8+mt*4}:{fb+8+mt*4+3}], v[{d}:{d+15}]")

    def step(sl, do_dma):
        reads(sl, 0, 0)
        for ss in range(4):
            if ss < 3:
                reads(sl, ss + 1, (ss + 1) % 2)
                a("s_waitcnt lgkmcnt(6)")
            else:
                a("s_waitcnt lgkmcnt(0)")
            mfmas(ss % 2)
            if do_dma and ss < 2:
                dma_kblk((sl + 2) % 3, ss)

    for st in range(2):
        dma_kblk(st, 0)
        dma_kblk(st, 1)
    a("s_waitcnt vmcnt(6)")
    a("s_barrier")
    a("s_movk_i32 s37, 5")
    a.label(L("loop"))
    for sl in range(3):
        step(sl, True)
        a("s_waitcnt vmcnt(6)")
        a("s_barrier")
    a("s_sub_u32 s37, s37, 1")
    a("s_cmp_lg_u32 s37, 0")
    a(f"s_cbranch_scc1 {L('loop')}")
    step(0, True)
    a("s_waitcnt vmcnt(6)")
    a("s_barrier")
    step(1, False)
    a("s_waitcnt vmcnt(0)")
    a("s_barrier")
    step(2, False)
    a("s_nop 15")
    a("s_nop 7")
    a(f"s_add_u32 s8, s26, {WS_P}")
    a("s_addc_u32 s9, s27, 0")
    a(f"s_mov_b32 s10, {4*64*8*16384}")
    a("s_lshl_b32 s35, s38, 6")
    a("s_lshl_b32 s36, s30, 3")
    a("s_add_u32 s35, s35, s36")
    a("s_add_u32 s35, s35, s31")
    a("s_lshl_b32 s35, s35, 3")
    a("s_add_u32 s35, s35, s20")
    a("s_lshl_b32 s35, s35, 14")
    a(f"v_lshlrev_b32 v{t}, 4, v2")
    for i in range(16):
        r = B_ACC + 4 * i
        a(f"buffer_store_dwordx4 v[{r}:{r+3}], v{t}, s[8:11], s35 offen offset:{i*1024}" if i < 4 else
          f"buffer_store_dwordx4 v[{r}:{r+3}], v{t+1+(i//4-1)}, s[8:11], s35 offen offset:{(i%4)*1024}")
        if i % 4 == 3 and i < 15:
            a(f"v_add_u32 v{t+1+i//4}, {4096*(i//4+1)}, v{t}")
    a.label(L("done"))
    a("s_endpgm")


def emit_combine(a):
    kernel_begin(a, "comb_kernel")
    a("s_cmp_ge_u32 s2, 512")
    a("s_cbranch_scc1 L_comb_done")
    a("s_load_dwordx2 s[4:5], s[0:1], 0")
    a("s_load_dwordx2 s[6:7], s[0:1], 56")
    a("s_load_dwordx2 s[26:27], s[0:1], 72")
    a("v_lshrrev_b32 v1, 6, v0")
    a("v_and_b32 v2, 63, v0")
    a("s_nop 0")
    a("v_readfirstlane_b32 s20, v1")
    a("s_lshl_b32 s3, s2, 2")
    a("s_add_u32 s3, s3, s20")
    a("s_lshl_b32 s3, s3, 12")
    a("v_lshlrev_b32 v3, 4, v2")
    a("s_waitcnt lgkmcnt(0)")
    srd(a, 8, 4, 5, 4194304)
    srd(a, 12, 6, 7, 4194304)
    a(f"s_add_u32 s16, s26, {WS_P}")
    a("s_addc_u32 s17, s27, 0")
    a(f"s_mov_b32 s18, {4*64*8*16384}")
    a("s_mov_b32 s19, 0x00020000")
    for ks in range(4):
        a(f"s_add_u32 s21, s3, {ks*64*8*16384}")
        for g in range(4):
            a(f"buffer_load_dwordx4 v[{16+16*ks+4*g}:{16+16*ks+4*g+3}], v3, s[16:19], s21 offen offset:{g*1024}")
    a("s_lshr_b32 s22, s2, 6")
    a("s_bfe_u32 s23, s2, 0x30003")
    a("s_bfe_u32 s24, s2, 0x20001")
    a("s_and_b32 s25, s2, 1")
    a("s_lshr_b32 s28, s20, 1")
    a("s_and_b32 s29, s20, 1")
    a("s_lshl_b32 s30, s22, 8")
    a("s_lshl_b32 s31, s24, 6")
    a("s_add_u32 s30, s30, s31")
    a("s_lshl_b32 s31, s29, 5")
    a("s_add_u32 s30, s30, s31")
    a("s_lshl_b32 s31, s23, 7")
    a("s_lshl_b32 s32, s25, 6")
    a("s_add_u32 s31, s31, s32")
    a("s_lshl_b32 s32, s28, 5")
    a("s_add_u32 s31, s31, s32")
    a("v_and_b32 v4, 31, v2")
    a("v_lshrrev_b32 v5, 5, v2")
    a("v_add_u32 v4, s30, v4")
    a("v_lshlrev_b32 v4, 11, v4")
    a("v_lshl_add_u32 v5, v5, 2, s31")
    a("v_lshl_add_u32 v4, v5, 1, v4")
    for g in range(4):
        a(f"buffer_load_dwordx2 v[{8+2*g}:{9+2*g}], v4, s[8:11], 0 offen offset:{g*16}")
    a("s_waitcnt vmcnt(0)")
    for i in range(16):
        a(f"v_add_f32 v{16+i}, v{16+i}, v{32+i}")
        a(f"v_add_f32 v{48+i}, v{48+i}, v{64+i}")
    for i in range(16):
        a(f"v_add_f32 v{16+i}, v{16+i}, v{48+i}")
    for g in range(4):
        a(f"v_lshlrev_b32 v{32+4*g}, 16, v{8+2*g}")
        a(f"v_and_b32 v{33+4*g}, 0xffff0000, v{8+2*g}")
        a(f"v_lshlrev_b32 v{34+4*g}, 16, v{9+2*g}")
        a(f"v_and_b32 v{35+4*g}, 0xffff0000, v{9+2*g}")
    for i in range(16):
        a(f"v_add_f32 v{16+i}, v{16+i}, v{32+i}")
    for g in range(4):
        a(f"v_cvt_pk_bf16_f32 v{8+2*g}, v{16+4*g}, v{17+4*g}")
        a(f"v_cvt_pk_bf16_f32 v{9+2*g}, v{18+4*g}, v{19+4*g}")
        a(f"buffer_store_dwordx2 v[{8+2*g}:{9+2*g}], v4, s[12:15], 0 offen offset:{g*16}")
    a.label("L_comb_done")
    a("s_endpgm")


def main():
    a = Asm()
    kernels = []
    emit_ln(a); kernels.append(("ln_kernel", 48, 512, 256, 0))
    emit_gemm1(a); kernels.append(("gemm1_kernel", A_END, 256, 512, 4 * STG))
    emit_attn(a); kernels.append(("attn_kernel", 256, 512, 256, 24576))
    emit_gemm2(a); kernels.append(("gemm2_kernel", B_END, 256, 512, 3 * STG2))
    emit_combine(a); kernels.append(("comb_kernel", 80, 512, 256, 0))
    hdr = "; generated by gen4.py (own generator)\n"
    for n, v, g, b, lds in kernels:
        hdr += f"; @launch kernel={n} grid=({g},1,1) block=({b},1,1) lds={lds}\n"
    out = hdr + '.amdgcn_target "amdgcn-amd-amdhsa--gfx950"\n.text\n' + a.text()
    out += '.section .rodata,"a"\n'
    for n, v, g, b, lds in kernels:
        out += ".p2align 6\n" + kernel_desc(n, v)
    open(os.environ.get("OUT", f"cdna_kernels/{NAME}.s"), "w").write(out)


main()
```
